```python
import torch

def _softmax(x, axis=-1):
    return torch.softmax(x, dim=axis)

def _gelu(x):
    return torch.nn.functional.gelu(x, approximate='tanh')

def _silu(x):
    return torch.nn.functional.silu(x)

def _sigmoid(x):
    return torch.sigmoid(x)

def _layernorm(x, axis=-1, eps=1e-05):
    m = x.mean(dim=axis, keepdim=True)
    v = x.var(dim=axis, keepdim=True, unbiased=False)
    return (x - m) / torch.sqrt(v + eps)

def _scatter_add(tgt, idx, src, axis=0):
    return tgt.clone().index_add_(axis, idx, src)

def _segment_sum(src, seg, n):
    out = torch.zeros((n,) + src.shape[1:], dtype=src.dtype)
    return out.index_add_(0, seg, src)

def _pad(x, pw):
    flat = tuple((v for pair in reversed(pw) for v in pair))
    return torch.nn.functional.pad(x, flat)
kernel_name = 'adaLN_cond__softmax_full_mha__dense_activation_relu__prompt'

def setup_inputs():

    _w = lambda a: (lambda t: t.to(torch.bfloat16) if t.is_floating_point() else t)(torch.as_tensor(a))

    def _A_setup():
        B, S, D = (1, 2048, 512)
        return {'x': _w((lambda *s: torch.randn(*s, dtype=torch.bfloat16) * 0.05)(B, S, D)), 'wqkv': _w((lambda *s: torch.randn(*s, dtype=torch.bfloat16) * 0.05)(D, 3 * D)), 'wo': _w((lambda *s: torch.randn(*s, dtype=torch.bfloat16) * 0.05)(D, D))}
    _A_in = _A_setup()

    def _B_setup():
        B, S, D, Dff = (1, 2048, 512, 1376)
        return {'x': _w((lambda *s: torch.randn(*s, dtype=torch.bfloat16) * 0.05)(B, S, D)), 'w1': _w((lambda *s: torch.randn(*s, dtype=torch.bfloat16) * 0.05)(D, Dff)), 'w2': _w((lambda *s: torch.randn(*s, dtype=torch.bfloat16) * 0.05)(Dff, D))}
    _B_in = _B_setup()
    return {'A_x': _A_in['x'], 'A_wqkv': _A_in['wqkv'], 'A_wo': _A_in['wo'], 'B_x': _B_in['x'], 'B_w1': _B_in['w1'], 'B_w2': _B_in['w2'], 'c': _w((lambda *s: torch.randn(*s, dtype=torch.bfloat16) * 0.1)(1, 512) * 8.0), 'w_mod': _w((lambda *s: torch.randn(*s, dtype=torch.bfloat16) * 0.1)(512, 6 * 512) * 512 ** (-0.5) * 8.0)}

def reference(A_x, A_wqkv, A_wo, B_x, B_w1, B_w2, c, w_mod):

    def _A_ref(x, wqkv, wo):
        B, S, D = x.shape
        H = 32
        Dh = D // H
        qkv = (lambda x, *d: x.permute(*d))((x @ wqkv).reshape(B, S, 3, H, Dh), 2, 0, 3, 1, 4)
        q, k, v = (qkv[0], qkv[1], qkv[2])
        scale = Dh ** (-0.5)
        scores = torch.einsum('bhqd,bhkd->bhqk', q, k) * scale
        p = _softmax(scores, axis=-1)
        o = torch.einsum('bhqk,bhkd->bhqd', p, v)
        return (lambda x, *d: x.permute(*d))(o, 0, 2, 1, 3).reshape(B, S, D) @ wo

    def _B_ref(x, w1, w2):
        h = torch.einsum('bsd,df->bsf', x, w1)
        zero = torch.zeros_like(h)
        h = torch.maximum(h, zero)
        return torch.einsum('bsf,fd->bsd', h, w2)
    x = A_x
    mod = (_silu(c) @ w_mod).reshape(c.shape[0], 6, 1, -1)
    sa, ca, ga, sb, cb, gb = (mod[:, 0].clone(), mod[:, 1].clone(), mod[:, 2].clone(), mod[:, 3].clone(), mod[:, 4].clone(), mod[:, 5].clone())
    h = _layernorm(x, axis=-1) * (1 + ca) + sa
    x = x + ga * _A_ref(h, A_wqkv, A_wo)
    h = _layernorm(x, axis=-1) * (1 + cb) + sb
    x = x + gb * _B_ref(h, B_w1, B_w2)
    return x
```

```python
import re

TRANS = ("v_exp_f32", "v_log_f32", "v_rcp_f32", "v_rsq_f32", "v_sqrt_f32", "v_sin_f32", "v_cos_f32")
_REG = re.compile(r"^(-?)(?:abs\()?([vsa])(?:(\d+)|\[(\d+):(\d+)\])\)?$")


def regs_of(tok):
    tok = tok.strip()
    if tok.startswith("|") and tok.endswith("|"):
        tok = tok[1:-1]
    if tok.startswith("-|") and tok.endswith("|"):
        tok = tok[2:-1]
    if tok in ("vcc", "exec"):
        return {tok + "_lo", tok + "_hi"}
    if tok in ("vcc_lo", "vcc_hi", "exec_lo", "exec_hi", "m0"):
        return {tok}
    m = _REG.match(tok)
    if not m:
        return set()
    k = m.group(2)
    if m.group(3) is not None:
        return {k + m.group(3)}
    return {k + str(i) for i in range(int(m.group(4)), int(m.group(5)) + 1)}


class Ins:
    __slots__ = ("text", "op", "ops", "mods", "defs", "uses", "cls", "label", "a", "b", "c", "passes", "target", "raw")

    def __init__(self, text):
        self.text = text
        self.label = None
        self.raw = False
        self.defs = set()
        self.uses = set()
        self.a = self.b = self.c = set()
        self.passes = 0
        self.target = None
        t = text.split(";")[0].strip()
        if t.endswith(":"):
            self.label = t[:-1]
            self.cls = "label"
            self.op = ""
            self.ops = []
            self.mods = ""
            return
        if t.startswith(".") or t == "":
            self.cls = "dir"
            self.op = ""
            self.ops = []
            self.mods = ""
            return
        sp = t.split(None, 1)
        op = sp[0]
        rest = sp[1] if len(sp) > 1 else ""
        ops, cur, depth = [], "", 0
        for ch in rest:
            if ch in "[(":
                depth += 1
            if ch in "])":
                depth -= 1
            if ch == "," and depth == 0:
                ops.append(cur.strip())
                cur = ""
            else:
                cur += ch
        if cur.strip():
            ops.append(cur.strip())
        mods = ""
        if ops:
            last = ops[-1].split(None, 1)
            if len(last) > 1 and not op.startswith("s_waitcnt"):
                ops[-1] = last[0]
                mods = last[1]
        self.op, self.ops, self.mods = op, ops, mods
        R = [regs_of(o) for o in ops]
        U = lambda idx: set().union(*[R[i] for i in idx if i < len(R)]) if idx else set()
        n = len(ops)
        if op.startswith("v_mfma"):
            self.cls = "mfma"
            self.defs = R[0]
            self.a, self.b, self.c = R[1], R[2], R[3]
            self.uses = self.a | self.b | self.c
            self.passes = 8 if "32x32" in op else 4
        elif op.startswith("v_smfmac"):
            self.cls = "mfma"
            self.defs = R[0]
            self.a, self.b, self.c = R[1], R[2] | R[3], R[0]
            self.uses = self.a | self.b | self.c
            self.passes = 8 if "32x32" in op else 4
        elif op.startswith("v_"):
            self.cls = "valu"
            if op.startswith("v_nop"):
                pass
            elif op.startswith("v_permlane") and "swap" in op:
                self.defs = R[0] | R[1]
                self.uses = R[0] | R[1]
            elif op.startswith(("v_add_co", "v_sub_co", "v_addc_co", "v_subb_co")):
                self.defs = R[0] | R[1]
                self.uses = U(range(2, n))
            else:
                self.defs = set(R[0])
                self.uses = U(range(1, n))
                if op.startswith(("v_fmac", "v_dot2c", "v_writelane")) or "dpp" in op or "sdwa" in op:
                    self.uses |= R[0]
                if op.startswith("v_cmpx"):
                    self.defs |= {"exec_lo", "exec_hi"}
        elif op.startswith("ds_"):
            self.cls = "ds"
            if op.startswith(("ds_read", "ds_bpermute", "ds_permute", "ds_swizzle")):
                self.defs = R[0]
                self.uses = U(range(1, n))
            else:
                self.uses = U(range(0, n))
        elif op.startswith("buffer_") or op.startswith("global_"):
            self.cls = "vmem"
            islds = bool(re.search(r"\blds\b", mods)) or "_lds_" in op
            if "load" in op and not islds:
                self.defs = R[0]
                self.uses = U(range(1, n))
            else:
                self.uses = U(range(0, n))
                if islds:
                    self.uses |= {"m0"}
        elif op.startswith(("s_load", "s_memtime", "s_memrealtime")):
            self.cls = "smem"
            self.defs = R[0]
            self.uses = U(range(1, n))
        elif op.startswith("s_"):
            self.cls = "salu"
            if op.startswith(("s_cbranch", "s_branch")):
                self.cls = "branch"
                self.target = ops[0]
                if "vcc" in op:
                    self.uses = {"vcc_lo", "vcc_hi"}
            elif op.startswith(("s_cmp", "s_bitcmp")):
                self.uses = U(range(0, n))
            elif op.startswith(("s_waitcnt", "s_nop", "s_barrier", "s_endpgm", "s_setprio", "s_sleep")):
                pass
            else:
                self.defs = set(R[0]) if R else set()
                self.uses = U(range(1, n))
                if "saveexec" in op:
                    self.defs |= {"exec_lo", "exec_hi"}
                if op.startswith(("s_addk", "s_mulk")):
                    self.uses |= R[0]
        else:
            raise ValueError("unknown instruction: " + text)

    def states(self):
        if self.cls in ("label", "dir"):
            return 0
        if self.op == "s_nop":
            return int(self.ops[0], 0) + 1
        return 1


def isv(r):
    return r[0] in "va" and r[1:].isdigit()


def need(p, c):
    w = 0
    if p.cls == "valu":
        vd = {r for r in p.defs if isv(r)}
        sd = p.defs - vd
        isdot = p.op.startswith("v_dot")
        if vd:
            if c.cls == "mfma" and vd & c.uses:
                w = max(w, 3 if isdot else 2)
            if c.cls == "valu":
                if c.op.startswith(("v_readlane", "v_readfirstlane")) and vd & c.uses:
                    w = max(w, 1)
                if ("dpp" in c.op or c.op.startswith("v_permlane")) and vd & c.uses:
                    w = max(w, 2)
                if p.op.split("_e")[0] in TRANS or p.op in TRANS:
                    if not (c.op in TRANS) and vd & c.uses:
                        w = max(w, 1)
                if ("sdwa" in p.op or ("op_sel" in p.mods and not p.op.startswith("v_pk"))) and vd & (c.uses | c.defs):
                    w = max(w, 1)
            if isdot and c.cls in ("valu", "ds", "vmem") and vd & (c.uses | c.defs):
                if c.op == p.op and not (vd & (regs_of(c.ops[1]) | regs_of(c.ops[2]))):
                    pass
                else:
                    w = max(w, 3)
        if sd:
            if c.cls == "vmem" and sd & c.uses:
                w = max(w, 5)
            if c.cls == "valu" and sd & c.uses:
                w = max(w, 4 if c.op.startswith(("v_readlane", "v_writelane")) else 2)
            if c.cls == "valu" and c.op.startswith("v_cndmask") and len(c.ops) == 3 and ("vcc_lo" in sd):
                w = max(w, 2)
            if c.cls in ("salu", "branch", "smem") and sd & c.uses:
                w = max(w, 1)
            if "exec_lo" in sd and c.cls in ("mfma", "valu"):
                w = max(w, 5)
    elif p.cls == "mfma":
        big = p.passes == 8
        if c.cls == "mfma":
            if p.defs & (c.a | c.b):
                w = max(w, 12 if big else 8)
            if p.defs & c.c and not (p.defs == c.c and p.passes == c.passes):
                w = max(w, 10 if big else 6)
            if p.defs & c.defs and p.passes != c.passes:
                w = max(w, 10 if big else 6)
        elif c.cls in ("valu", "ds", "vmem"):
            if p.defs & (c.uses | c.defs):
                w = max(w, 12 if big else 8)
            if c.cls == "valu" and p.c & c.defs:
                w = max(w, 7 if big else 3)
    elif p.cls == "salu":
        if "m0" in p.defs and c.cls == "vmem" and "m0" in c.uses:
            w = max(w, 1)
    elif p.cls == "vmem":
        if "store" in p.op and p.op.endswith(("x3", "x4")):
            data = regs_of(p.ops[0])
            if data & c.defs:
                w = max(w, 2 if c.cls == "valu" else 1)
    return w


class Asm:
    def __init__(self):
        self.ins = []
        self.vm = {}
        self.lg = {}
        self.vmreg = {}
        self.lgreg = {}
        self.smem = set()
        self.nh = 0
        self.nlab = 0
        self.auto = []

    def snap(self):
        return (dict(self.vm), dict(self.lg), dict(self.vmreg), dict(self.lgreg))

    def restore(self, s):
        self.vm, self.lg, self.vmreg, self.lgreg = (dict(x) for x in s)

    def merge(self, s):
        vm, lg, vmreg, lgreg = s
        for mine, other in ((self.vm, vm), (self.lg, lg)):
            for h, n in other.items():
                mine[h] = min(mine.get(h, 1 << 30), n)
        for mine, other, q in ((self.vmreg, vmreg, self.vm), (self.lgreg, lgreg, self.lg)):
            for r, h in other.items():
                if h not in q:
                    continue
                if r in mine and mine[r] in q and q[mine[r]] <= q[h]:
                    continue
                mine[r] = h

    def newlabel(self, base="L"):
        self.nlab += 1
        return f"{base}_{self.nlab}"

    def L(self, name):
        self.ins.append(Ins(name + ":"))

    def D(self, text):
        self.ins.append(Ins(text))

    def C(self, text):
        i = Ins("")
        i.text = "; " + text
        self.ins.append(i)

    def _apply_wait(self, vm=None, lg=None):
        if vm is not None:
            self.vm = {h: n for h, n in self.vm.items() if n < vm}
        if lg is not None:
            if lg == 0:
                self.lg = {}
            elif not any(h in self.smem for h in self.lg):
                self.lg = {h: n for h, n in self.lg.items() if n < lg}

    def wait(self, vm=None, lg=None):
        parts = []
        if vm is not None:
            vm = min(vm, 62)
            parts.append(f"vmcnt({vm})")
        if lg is not None:
            lg = min(lg, 14)
            parts.append(f"lgkmcnt({lg})")
        self.ins.append(Ins("s_waitcnt " + " ".join(parts)))
        self._apply_wait(vm, lg)

    def waith(self, *hs):
        vm = lg = None
        for h in hs:
            if h in self.vm:
                vm = self.vm[h] if vm is None else min(vm, self.vm[h])
            if h in self.lg:
                n = 0 if any(k in self.smem for k in self.lg) else self.lg[h]
                lg = n if lg is None else min(lg, n)
        if vm is not None or lg is not None:
            self.wait(vm, lg)

    def I(self, text):
        i = Ins(text)
        if i.op == "s_waitcnt":
            vm = re.search(r"vmcnt\((\d+)\)", text)
            lg = re.search(r"lgkmcnt\((\d+)\)", text)
            self.ins.append(i)
            self._apply_wait(int(vm.group(1)) if vm else None, int(lg.group(1)) if lg else None)
            return None
        touched = i.uses | i.defs
        hs = [self.vmreg[r] for r in touched if r in self.vmreg and self.vmreg[r] in self.vm]
        hs += [self.lgreg[r] for r in touched if r in self.lgreg and self.lgreg[r] in self.lg]
        if i.cls == "ds":
            hs = [h for h in hs if not (h in self.lg and h not in self.smem and
                                        not any(self.lgreg.get(r) == h for r in i.uses))]
        if hs:
            self.waith(*hs)
        self.ins.append(i)
        h = None
        if i.cls == "vmem":
            self.nh += 1
            h = self.nh
            for k in self.vm:
                self.vm[k] += 1
            self.vm[h] = 0
            for r in i.defs:
                self.vmreg[r] = h
        elif i.cls in ("ds", "smem"):
            self.nh += 1
            h = self.nh
            for k in self.lg:
                self.lg[k] += 1
            self.lg[h] = 0
            if i.cls == "smem":
                self.smem.add(h)
            for r in i.defs:
                self.lgreg[r] = h
        return h

    def __call__(self, text):
        h = None
        for ln in text.strip().split("\n"):
            ln = ln.strip()
            if not ln or ln.startswith(";"):
                continue
            if ln.split(";")[0].strip().endswith(":"):
                self.L(ln.split(";")[0].strip()[:-1])
            else:
                h = self.I(ln)
        return h

    def fix_hazards(self, maxw=12):
        total = 0
        while True:
            ins = self.ins
            lab = {x.label: k for k, x in enumerate(ins) if x.label}
            jumps = {}
            for k, x in enumerate(ins):
                if x.cls == "branch":
                    jumps.setdefault(lab[x.target], []).append(k)
            inserts = {}
            for k, c in enumerate(ins):
                if c.cls in ("label", "dir"):
                    continue
                worst = 0
                stack = [(k, 0)]
                seen = {}
                while stack:
                    pos, dist = stack.pop()
                    preds = []
                    if pos > 0:
                        pv = ins[pos - 1]
                        if not (pv.op in ("s_branch", "s_endpgm")):
                            preds.append(pos - 1)
                    if ins[pos].cls == "label":
                        preds += jumps.get(pos, [])
                    for q in preds:
                        if seen.get(q, 99) <= dist:
                            continue
                        seen[q] = dist
                        p = ins[q]
                        if p.cls not in ("label", "dir"):
                            w = need(p, c)
                            if w - dist > worst:
                                worst = w - dist
                        nd = dist + p.states() + inserts.get(q, 0)
                        if nd < maxw:
                            stack.append((q, nd))
                if worst > 0:
                    inserts[k] = worst
            if not inserts:
                return total
            out = []
            for k, x in enumerate(ins):
                if k in inserts:
                    out.append(Ins(f"s_nop {inserts[k] - 1}"))
                    total += 1
                out.append(x)
            self.ins = out

    def text(self):
        o = []
        for x in self.ins:
            if x.cls == "label":
                o.append(x.text)
            else:
                o.append("    " + x.text)
        return "\n".join(o)
```

```python
import sys, os, math, struct
sys.path.insert(0, os.path.dirname(os.path.abspath(__file__)))
from asmlib import Asm

NAME = "adaLN_cond__softmax_full_mha__dense_activation_relu__prompt"

WS_EPOCH = 0
WS_MODG = 0x1000
WS_STATG = 0x4000
WS_PFLAG = 0xC000
WS_UB2 = 0xD000
WS_KVFLAG = 0x10000
WS_WOF = 0x20000
WS_W1F = 0xA0000
WS_W2F = 0x200000
WS_KV = 0x400000
WS_GRP = 0x800000
G_O, G_X1, G_HID = 0, 0x40000, 0x80000
G_OFLAG, G_X1FLAG, G_HFLAG = 0x130000, 0x130400, 0x130800
WS_STAMP = 0x1800000
WS_SIZE = 0x1900000

KVS = 2064
L_WM = 0x0
L_X = 0x8000
L_W = 0x18000
L_PF = 0x20400
L_SC = 0x24400
L_P = 0x24800
L_G = 0x24C00
L_UBP = 0x26C00
L_ST2 = 0x27C00
L_O = 0x0
L_X1 = 0x10000
RED_ROW = 272
RED_W = 64 * RED_ROW
LDS_SIZE = 163840

sW = "s3"
sX, sWQ, sWM, sC, sWS, sOUT, sPF, sCODE = ("s[28:31]", "s[32:35]", "s[36:39]", "s[40:43]", "s[44:47]",
                                           "s[48:51]", "s[52:55]", "s[56:59]")
sGX, sJ, sTAG, sTQ, sCG, sGRP, sLOC, sSPIN = ("s60", "s61", "s62", "s63", "s64", "s65", "s66", "s67")
sKVB, sB0, sB1, sTASK, sPFD, sU0, sU1, sW2B = ("s68", "s69", "s70", "s71", "s72", "s73", "s74", "s75")
T0, T1, T2, T3, T4, T5 = ("s76", "s77", "s78", "s79", "s80", "s81")
STAMP0 = 84

QSCALE = 0.25 * math.log2(math.e)
LOG2E = math.log2(math.e)


def f2u(x):
    return "0x%08x" % struct.unpack("<I", struct.pack("<f", x))[0]


def vr(b, n=4):
    return f"v[{b}:{b + n - 1}]"


class Gen:
    def __init__(self, stamps=False, stop=None, force_safe=False, force_slow=False):
        self.a = Asm()
        self.stamps = stamps
        self.stop = stop
        self.force_safe = force_safe
        self.force_slow = force_slow
        self.nstamp = 0
        self.stamp_names = []

    def stamp(self, name):
        if not self.stamps:
            return
        a = self.a
        assert self.nstamp < 16
        a("s_memtime s[82:83]")
        a.wait(lg=0)
        a(f"s_mov_b32 s{STAMP0 + self.nstamp}, s82")
        self.nstamp += 1
        self.stamp_names.append(name)

    def srd(self, dst, lo, size):
        d = int(dst[2:].split(":")[0])
        self.a(f"""
        s_mov_b32 s{d}, s{lo}
        s_mov_b32 s{d + 1}, s{lo + 1}
        s_mov_b32 s{d + 2}, {size}
        s_mov_b32 s{d + 3}, 0x20000""")

    def dma(self, vaddr, srd, soff, off=0, sc=""):
        o = f" offset:{off}" if off else ""
        return self.a(f"buffer_load_dwordx4 {vaddr}, {srd}, {soff} offen{o} {sc} lds")

    def poll(self, load, cmps):
        a = self.a
        lab, done = a.newlabel("L_poll"), a.newlabel("L_polld")
        a(f"s_mov_b32 {sSPIN}, 0x40000")
        a.L(lab)
        a(load)
        a(f"s_sub_u32 {sSPIN}, {sSPIN}, 1")
        a(f"s_cbranch_scc1 {done}")
        a.wait(vm=0)
        a(f"v_cmp_ne_u32 vcc, {sTAG}, {cmps[0]}")
        for c in cmps[1:]:
            a(f"v_cmp_ne_u32 s[82:83], {sTAG}, {c}")
            a("s_or_b64 vcc, vcc, s[82:83]")
        a(f"s_cbranch_vccnz {lab}")
        a.L(done)
        a.wait(vm=0)

    def pub(self, fn):
        a = self.a
        ls, ld = a.newlabel("L_safe"), a.newlabel("L_pubd")
        a(f"s_cmp_eq_u32 {sLOC}, 0")
        a(f"s_cbranch_scc1 {ls}")
        s0 = a.snap()
        fn("")
        a(f"s_branch {ld}")
        s1 = a.snap()
        a.restore(s0)
        a.L(ls)
        fn("sc1")
        a.merge(s1)
        a.L(ld)

    def flag_store(self, vtmp, voff, soff, sc):
        a = self.a
        a(f"s_mov_b64 exec, 1")
        a(f"buffer_store_dword {vtmp}, {voff}, {sWS}, {soff} offen {sc}")
        a(f"s_mov_b64 exec, -1")

    def build(self):
        a = self.a
        a("s_cmp_ge_u32 s2, 256")
        a("s_cbranch_scc1 L_end")
        if self.stamps:
            a("s_memrealtime s[100:101]")
            self.stamp("entry")
        a("""
        s_load_dwordx16 s[4:19], s[0:1], 0
        s_load_dwordx4 s[20:23], s[0:1], 64
        s_load_dwordx2 s[24:25], s[0:1], 80
        s_getpc_b64 s[56:57]
        L_pc:
        v_lshrrev_b32 v1, 6, v0
        v_and_b32 v0, 63, v0
        v_readfirstlane_b32 s3, v1
        """)
        a(f"""
        s_and_b32 {sGX}, s2, 7
        s_lshr_b32 {sJ}, s2, 3
        s_and_b32 s57, s57, 0xffff
        s_mov_b32 s58, L_code_end-L_pc
        s_mov_b32 s59, 0x20000
        v_lshlrev_b32 v6, 4, v0
        """)
        vL16 = "v6"
        a("""
        v_lshrrev_b32 v7, 4, v0             ; g4
        v_and_b32 v8, 15, v0                ; n
        v_lshrrev_b32 v1, 2, v0
        v_and_b32 v2, 3, v0
        v_mul_u32_u24 v1, 6144, v1
        v_lshl_add_u32 v9, v2, 4, v1
        v_lshrrev_b32 v1, 1, v0
        v_and_b32 v2, 1, v0
        v_mul_u32_u24 v1, 3072, v1
        v_lshl_add_u32 v10, v2, 4, v1
        v_lshrrev_b32 v1, 3, v0
        v_and_b32 v2, 7, v0
        v_xor_b32 v2, v2, v7
        v_lshlrev_b32 v1, 10, v1
        v_lshl_add_u32 v11, v2, 4, v1
        v_xor_b32 v12, 64, v11              ; (rh=1)
        v_lshlrev_b32 v13, 1, v0            ; c voffset
        """)
        vG4, vN = "v7", "v8"
        a.wait(lg=0)
        hE = a(f"s_load_dword {sTAG}, s[24:25], 0")
        self.srd(sWM, 18, 512 * 6144)
        self.srd(sC, 16, 1024)
        self.srd(sX, 4, 2048 * 1024)
        a("s_cmp_ge_u32 s2, 96")
        a("s_cbranch_scc1 L_noprod1")
        s0 = a.snap()
        a(f"s_lshl_b32 {T0}, {sW}, 7")
        hC = a(f"buffer_load_ushort v16, v13, {sC}, {T0} offen")
        a(f"""
        s_mul_i32 {T0}, {sW}, {64 * 6144}
        s_lshl_b32 {T1}, s2, 6
        s_add_u32 {T0}, {T0}, {T1}
        s_lshl_b32 {T1}, {sW}, 12
        """)
        for i in range(4):
            a(f"s_add_u32 m0, {T1}, {L_WM + i * 1024}")
            hWM = self.dma("v9", sWM, T0)
            if i < 3:
                a(f"s_add_u32 {T0}, {T0}, {16 * 6144}")
        a.merge(s0)
        a.L("L_noprod1")
        a(f"""
        s_lshl_b32 {T0}, {sGX}, 18
        s_lshl_b32 {T1}, {sJ}, 13
        s_add_u32 {T2}, {T0}, {T1}
        s_lshl_b32 {T1}, {sW}, 10
        s_add_u32 {T2}, {T2}, {T1}
        """)
        a(f"buffer_load_dwordx4 v[20:23], {vL16}, {sX}, {T2} offen")
        self.srd(sWQ, 6, 512 * 3072)
        a(f"""
        s_mul_i32 {T2}, {sW}, {64 * 3072}
        s_lshl_b32 {T1}, {sJ}, 5
        s_add_u32 {T2}, {T2}, {T1}
        s_mul_i32 {T3}, {sW}, 6144
        """)
        for sp in range(2):
            a(f"s_add_u32 m0, {T3}, {L_W + sp * 3072}")
            for p in range(3):
                hW = self.dma("v10", sWQ, T2, off=p * 1024)
            if sp == 0:
                a(f"s_add_u32 {T2}, {T2}, {32 * 3072}")
        a(f"s_cmp_lg_u32 {sW}, 7")
        a("s_cbranch_scc1 L_nopf")
        s0 = a.snap()
        a(f"""
        v_lshlrev_b32 v1, 7, v8
        s_lshl_b32 {T1}, {sJ}, 11
        buffer_load_dword v19, v1, {sCODE}, {T1} offen
        """)
        a.merge(s0)
        a.L("L_nopf")
        XF = lambda T, s: 128 + (s * 2 + T) * 4
        a(f"""
        s_lshl_b32 {T1}, {sW}, 15
        s_add_u32 {T4}, {T0}, {T1}
        s_lshl_b32 {T5}, {sW}, 13
        s_add_u32 {T5}, {T5}, {L_X}
        """)
        hx = {}

        def x_issue(q):
            kk, T = q >> 1, q & 1
            for rh in range(2):
                a(f"s_add_u32 m0, {T5}, {(q & 3) * 2048 + rh * 1024}")
                a(f"s_add_u32 {T1}, {T4}, {(16 * T + 8 * rh) * 1024 + kk * 128}")
                hx[q] = self.dma("v11" if rh == 0 else "v12", sX, T1)

        for q in range(4):
            x_issue(q)
        self.srd(sWS, 24, WS_SIZE)
        self.srd(sOUT, 20, 2048 * 1024)
        a(f"""
        v_lshrrev_b32 v1, 1, {vN}
        v_xor_b32 v1, v1, {vG4}
        v_lshlrev_b32 v1, 4, v1
        v_lshl_add_u32 v1, {vN}, 7, v1
        v_add_u32 v14, {T5}, v1
        v_xor_b32 v15, 64, v14
        """)
        a.waith(hE)
        a(f"""
        s_mul_i32 {sTAG}, {sTAG}, 0x41c64e6d
        s_add_u32 {sTAG}, {sTAG}, 0x3c6ef35f
        s_lshr_b32 {sTQ}, {sJ}, 3
        s_and_b32 {sCG}, {sJ}, 7
        s_lshl_b32 {sGRP}, {sGX}, 21
        s_add_u32 {sGRP}, {sGRP}, {WS_GRP}
        """)
        a("s_cmp_ge_u32 s2, 96")
        a("s_cbranch_scc1 L_noprod2")
        s0 = a.snap()
        a(f"""
        v_lshlrev_b32 v16, 16, v16
        v_mul_f32 v17, {f2u(-LOG2E)}, v16
        v_exp_f32 v17, v17
        s_lshl_b32 {T0}, {sW}, 7
        s_add_u32 {T0}, {T0}, {L_SC}
        v_add_f32 v17, 1.0, v17
        v_rcp_f32 v17, v17
        v_add_u32 v1, {T0}, v13
        v_mul_f32 v16, v16, v17
        v_cvt_pk_bf16_f32 v16, v16, v16
        ds_write_b16 v1, v16
        v_lshrrev_b32 v2, 5, v0             ; h
        v_lshlrev_b32 v1, 4, v2
        v_add_u32 v1, {T0}, v1
        """)
        for i in range(4):
            a(f"ds_read_b128 {vr(24 + 4 * i)}, v1 offset:{32 * i}")
        a(f"""
        v_bfe_u32 v3, v0, 2, 2
        v_lshl_add_u32 v3, v2, 3, v3
        v_lshlrev_b32 v3, 6, v3
        v_and_b32 v4, 1, {vG4}
        v_lshl_add_u32 v3, v4, 5, v3
        v_and_b32 v4, 3, v0
        v_lshl_add_u32 v3, v4, 3, v3
        s_lshl_b32 {T0}, {sW}, 12
        v_add_u32 v3, {T0}, v3
        """)
        a.waith(hWM)
        for i in range(4):
            a(f"ds_read_b64_tr_b16 {vr(40 + 4 * i, 2)}, v3 offset:{L_WM + 1024 * i}")
            a(f"ds_read_b64_tr_b16 {vr(42 + 4 * i, 2)}, v3 offset:{L_WM + 1024 * i + 256}")
        for i in range(4):
            c = "0" if i == 0 else vr(56, 16)
            a(f"v_mfma_f32_32x32x16_bf16 {vr(56, 16)}, {vr(24 + 4 * i)}, {vr(40 + 4 * i)}, {c}")
        a(f"""
        v_and_b32 v1, 31, v0
        v_lshlrev_b32 v1, 5, v1
        s_lshl_b32 {T0}, {sW}, 2
        s_add_u32 {T0}, {T0}, {L_P}
        v_add_u32 v1, {T0}, v1
        ds_write_b32 v1, v56
        """)
        a.wait(lg=0)
        a("s_barrier")
        a(f"s_cmp_lg_u32 {sW}, 0")
        a("s_cbranch_scc1 L_noprod2")
        s1 = a.snap()
        a(f"v_lshlrev_b32 v1, 6, {vN}")
        a(f"v_add_u32 v1, {L_P}, v1")
        for i in range(4):
            a(f"ds_read_b128 {vr(24 + 4 * i)}, v1 offset:{16 * i}")
        a(f"""
        v_pk_add_f32 v[24:25], v[24:25], v[26:27]
        v_pk_add_f32 v[28:29], v[28:29], v[30:31]
        v_pk_add_f32 v[32:33], v[32:33], v[34:35]
        v_pk_add_f32 v[36:37], v[36:37], v[38:39]
        v_pk_add_f32 v[24:25], v[24:25], v[28:29]
        v_pk_add_f32 v[32:33], v[32:33], v[36:37]
        v_add_f32 v24, v24, v25
        v_add_f32 v32, v32, v33
        v_cvt_pk_bf16_f32 v24, v24, v32
        s_lshr_b32 {T0}, s2, 4
        s_cmp_eq_u32 {T0}, 1
        s_cselect_b32 {T1}, 1.0, 0
        s_cmp_eq_u32 {T0}, 4
        s_cselect_b32 {T1}, 1.0, {T1}
        v_lshlrev_b32 v26, 16, v24
        v_and_b32 v27, 0xffff0000, v24
        v_add_f32 v26, {T1}, v26
        v_add_f32 v27, {T1}, v27
        v_cvt_pk_bf16_f32 v24, v26, v27
        v_mov_b32 v25, {sTAG}
        v_lshlrev_b32 v1, 3, v0
        s_lshl_b32 {T0}, s2, 7
        s_add_u32 {T0}, {T0}, {WS_MODG}
        s_mov_b64 exec, 0xffff
        buffer_store_dwordx2 v[24:25], v1, {sWS}, {T0} offen sc1
        s_mov_b64 exec, -1
        """)
        a.merge(s0)
        a.merge(s1)
        a.L("L_noprod2")
        self.stamp("modpub")
        for i in range(4):
            a(f"v_lshlrev_b32 v{24 + 2 * i}, 16, v{20 + i}")
            a(f"v_and_b32 v{25 + 2 * i}, 0xffff0000, v{20 + i}")
        a("""
        v_pk_add_f32 v[32:33], v[24:25], v[26:27]
        v_pk_add_f32 v[34:35], v[28:29], v[30:31]
        v_pk_add_f32 v[32:33], v[32:33], v[34:35]
        v_add_f32 v32, v32, v33
        """)

        def wave_sum(v):
            for m in ("row_shr:1 row_mask:0xf", "row_shr:2 row_mask:0xf", "row_shr:4 row_mask:0xf",
                      "row_shr:8 row_mask:0xf", "row_bcast:15 row_mask:0xa", "row_bcast:31 row_mask:0xc"):
                a(f"v_add_f32_dpp {v}, {v}, {v} {m} bank_mask:0xf")

        wave_sum("v32")
        a(f"v_mul_f32 v32, {f2u(1.0 / 512)}, v32")
        a(f"v_readlane_b32 {T0}, v32, 63")
        for i in range(8):
            a(f"v_subrev_f32 v{24 + i}, {T0}, v{24 + i}")
        a("v_mul_f32 v33, v24, v24")
        for i in range(1, 8):
            a(f"v_fmac_f32 v33, v{24 + i}, v{24 + i}")
        wave_sum("v33")
        a(f"""
        v_mov_b32 v34, {f2u(1e-5)}
        v_fmac_f32 v34, {f2u(1.0 / 512)}, v33
        v_rsq_f32 v34, v34
        v_mov_b32 v33, {sTAG}
        v_mov_b32 v35, {sTAG}
        s_lshl_b32 {T0}, {sGX}, 8
        s_lshl_b32 {T1}, {sJ}, 3
        s_add_u32 {T0}, {T0}, {T1}
        s_add_u32 {T0}, {T0}, {sW}
        s_lshl_b32 {T0}, {T0}, 4
        s_add_u32 {T0}, {T0}, {WS_STATG - 63 * 16}
        s_mov_b32 exec_lo, 0
        s_mov_b32 exec_hi, 0x80000000
        buffer_store_dwordx4 v[32:35], {vL16}, {sWS}, {T0} offen sc1
        s_mov_b64 exec, -1
        """)
        Wp = lambda sp, p: 104 + (sp * 3 + p) * 4
        Wu = lambda sp, p: 56 + (sp * 3 + p) * 8
        a(f"""
        v_lshlrev_b32 v1, 8, {vG4}
        v_lshl_add_u32 v1, {vN}, 3, v1      ; (8*g4 + r)*32 + cc*8
        s_mul_i32 {T0}, {sW}, 6144
        s_add_u32 {T0}, {T0}, {L_W}
        v_add_u32 v1, {T0}, v1
        v_add_u32 v5, {T0}, {vL16}
        """)
        a.waith(hW)
        for sp in range(2):
            for p in range(3):
                o = (sp * 3 + p) * 1024
                a(f"ds_read_b64_tr_b16 {vr(Wp(sp, p), 2)}, v1 offset:{o}")
                a(f"ds_read_b64_tr_b16 {vr(Wp(sp, p) + 2, 2)}, v1 offset:{o + 128}")
        for i in range(24):
            a(f"v_lshlrev_b32 v{56 + 2 * i}, 16, v{104 + i}")
            a(f"v_and_b32 v{57 + 2 * i}, 0xffff0000, v{104 + i}")
        for q in range(16):
            kk, T = q >> 1, q & 1
            a.waith(hx[q])
            a(f"ds_read_b128 {vr(XF(T, 2 * kk))}, v14 offset:{(q & 3) * 2048}")
            h = a(f"ds_read_b128 {vr(XF(T, 2 * kk + 1))}, v15 offset:{(q & 3) * 2048}")
            if q + 4 < 16:
                a.waith(h)
                x_issue(q + 4)
        self.stamp("xdone")
        a(f"""
        v_and_b32 v1, 31, v0
        v_lshrrev_b32 v2, 5, v0
        v_xor_b32 v2, 1, v2
        v_lshl_add_u32 v1, v2, 8, v1
        v_lshlrev_b32 v13, 3, v1
        s_lshl_b32 {T0}, {sW}, 8
        s_add_u32 {T0}, {T0}, {WS_MODG}
        s_lshl_b32 {T2}, {sW}, 10
        s_add_u32 {T2}, {T2}, {L_G}
        """)
        self.poll(f"buffer_load_dwordx2 v[16:17], v13, {sWS}, {T0} offen sc1", ["v17"])
        self.stamp("modgot")
        a(f"""
        s_lshl_b32 {T0}, {sGX}, 12
        s_lshl_b32 {T1}, {sW}, 9
        s_add_u32 {T0}, {T0}, {T1}
        s_add_u32 {T0}, {T0}, {WS_STATG}
        v_and_b32 v12, 0x1f0, {vL16}
        """)
        self.scale_block(3, Wp, Wu, T2, "v5", lds_out=True)
        self.poll(f"buffer_load_dwordx4 v[16:19], v12, {sWS}, {T0} offen sc1", ["v17", "v19"])
        a(f"""
        v_mul_f32 v16, v16, v18
        v_sub_f32 v16, 0, v16
        v_and_b32 v1, 31, v0
        v_lshl_add_u32 v1, v1, 2, {T2}
        ds_write_b32 v1, v18 offset:512
        ds_write_b32 v1, v16 offset:640
        """)
        a.wait(lg=0)
        a("s_barrier")
        self.stamp("wready")
        a(f"v_lshlrev_b32 v1, 6, v0")
        a(f"v_add_u32 v1, {L_UBP}, v1")
        for i in range(4):
            a(f"ds_read_b128 {vr(16 + 4 * i)}, v1 offset:{16 * i}")
        a(f"v_add_u32 v9, {L_W}, {vL16}")
        WB = lambda s, i: 56 + ((s % 3) * 2 + i) * 4

        def wread(s, parts):
            for i, p in enumerate(parts):
                a(f"ds_read_b128 {vr(WB(s, i))}, v9 offset:{s * 3072 + p * 1024}")

        wread(0, (1, 2))
        wread(1, (1, 2))
        a("""
        v_pk_add_f32 v[16:17], v[16:17], v[18:19]
        v_pk_add_f32 v[20:21], v[20:21], v[22:23]
        v_pk_add_f32 v[24:25], v[24:25], v[26:27]
        v_pk_add_f32 v[28:29], v[28:29], v[30:31]
        v_pk_add_f32 v[16:17], v[16:17], v[20:21]
        v_pk_add_f32 v[24:25], v[24:25], v[28:29]
        v_pk_add_f32 v[16:17], v[16:17], v[24:25]
        """)
        a(f"""
        v_lshl_add_u32 v1, v0, 2, {T2}
        ds_write_b32 v1, v16
        ds_write_b32 v1, v17 offset:256
        v_lshl_add_u32 v1, {vG4}, 4, {T2}
        v_lshl_add_u32 v2, {vN}, 2, {T2}
        ds_read_b128 v[80:83], v1               ; u_q
        ds_read_b128 v[84:87], v1 offset:256    ; b_q
        ds_read_b128 v[88:91], v1 offset:64     ; u_k
        ds_read_b128 v[92:95], v1 offset:320    ; b_k
        ds_read2_b32 v[96:97], v2 offset0:32 offset1:96    ; u_v, b_v
        ds_read2_b32 v[98:99], v2 offset0:128 offset1:160  ; r, mr (T0)
        ds_read2_b32 v[100:101], v2 offset0:144 offset1:176 ; r, mr (T1)
        ds_read_b128 v[104:107], v1 offset:512  ; r tokens T0
        ds_read_b128 v[108:111], v1 offset:576  ; r tokens T1
        ds_read_b128 v[112:115], v1 offset:640
        ds_read_b128 v[116:119], v1 offset:704
        """)
        aK, aV, aQ = (16, 20), (24, 28), (32, 36)
        for s in range(16):
            if s + 2 < 16:
                wread(s + 2, (1, 2))
            for T in range(2):
                c = "0" if s == 0 else vr(aK[T])
                a(f"v_mfma_f32_16x16x32_bf16 {vr(aK[T])}, {vr(WB(s, 0))}, {vr(XF(T, s))}, {c}")
            for T in range(2):
                c = "0" if s == 0 else vr(aV[T])
                a(f"v_mfma_f32_16x16x32_bf16 {vr(aV[T])}, {vr(XF(T, s))}, {vr(WB(s, 1))}, {c}")
            if s == 6:
                for T in range(2):
                    for i in range(4):
                        a(f"v_fma_f32 v{40 + 4 * T + i}, v{99 + 2 * T}, v{88 + i}, v{92 + i}")
            if s == 8:
                for i in range(8):
                    a(f"v_fma_f32 v{112 + i}, v{112 + i}, v96, v97")
            if s == 10:
                for T in range(2):
                    for i in range(4):
                        a(f"v_fma_f32 v{48 + 4 * T + i}, v{99 + 2 * T}, v{80 + i}, v{84 + i}")
            if s == 12:
                a(f"""
                v_bfe_u32 v1, v0, 2, 2
                v_bfe_u32 v2, v0, 4, 1
                v_lshl_add_u32 v1, v1, 1, v2
                v_and_b32 v2, 0x23, v0
                v_lshl_add_u32 v1, v1, 2, v2
                v_lshlrev_b32 v10, 4, v1
                s_lshl_b32 {sKVB}, {sJ}, 17
                s_add_u32 {sKVB}, {sKVB}, {WS_KV}
                s_lshl_b32 {T0}, {sGX}, 3
                s_add_u32 {T0}, {T0}, {sW}
                s_lshl_b32 {T0}, {T0}, 11
                s_add_u32 {T0}, {T0}, {sKVB}
                s_mul_i32 {T1}, {sW}, {KVS}
                v_add_u32 v11, {T1}, v10
                v_add_u32 v12, {T1}, {vL16}
                """)
        WQ = lambda s: 56 + (s % 6) * 4
        for s in range(4):
            a(f"ds_read_b128 {vr(WQ(s))}, v9 offset:{s * 3072}")
        for T in range(2):
            for i in range(4):
                a(f"v_fma_f32 v{aK[T] + i}, v{98 + 2 * T}, v{aK[T] + i}, v{40 + 4 * T + i}")
        a("""
        v_cvt_pk_bf16_f32 v40, v16, v17
        v_cvt_pk_bf16_f32 v41, v18, v19
        v_cvt_pk_bf16_f32 v42, v20, v21
        v_cvt_pk_bf16_f32 v43, v22, v23
        """)
        for i in range(8):
            a(f"v_fma_f32 v{24 + i}, v{104 + i}, v{24 + i}, v{112 + i}")
        a("""
        v_permlane16_swap_b32 v40, v42
        v_permlane16_swap_b32 v41, v43
        v_cvt_pk_bf16_f32 v44, v24, v25
        v_cvt_pk_bf16_f32 v45, v26, v27
        v_cvt_pk_bf16_f32 v46, v28, v29
        v_cvt_pk_bf16_f32 v47, v30, v31
        """)
        a(f"buffer_store_dwordx4 v[40:43], v10, {sWS}, {T0} offen sc1")
        hKV = a(f"buffer_store_dwordx4 v[44:47], {vL16}, {sWS}, {T0} offen offset:1024 sc1")
        a(f"""
        ds_write_b128 v11, v[40:43]
        ds_write_b128 v12, v[44:47] offset:1024
        v_mov_b32 v120, 0x3f803f80
        v_mov_b32 v121, 0x3f803f80
        v_mov_b32 v122, 0x3f803f80
        v_mov_b32 v123, 0x3f803f80
        v_mov_b32 v1, {T1}
        ds_write_b128 v1, v[120:123] offset:2048
        """)
        self.stamp("kvdone")
        for s in range(16):
            if s + 4 < 16:
                a(f"ds_read_b128 {vr(WQ(s + 4))}, v9 offset:{(s + 4) * 3072}")
            for T in range(2):
                c = "0" if s == 0 else vr(aQ[T])
                a(f"v_mfma_f32_16x16x32_bf16 {vr(aQ[T])}, {vr(WQ(s))}, {vr(XF(T, s))}, {c}")
            if s == 4:
                a(f"""
                v_mov_b32 v3, {vL16}
                v_lshrrev_b32 v1, 5, v0
                v_lshlrev_b32 v1, 8, v1
                v_add_u32 v2, 1024, v1
                v_lshl_add_u32 v4, {vN}, 4, v2
                s_mov_b32 vcc_lo, 0x0ff00000
                s_mov_b32 vcc_hi, 0x0ff00000
                v_cndmask_b32 v4, v4, v2, vcc
                v_add_u32 v5, 512, v4
                v_mov_b32 v1, 2048
                s_mov_b32 vcc_lo, 0xf00f0000
                s_mov_b32 vcc_hi, 0xf00f0000
                v_cndmask_b32 v4, v4, v1, vcc
                v_cndmask_b32 v5, v5, v1, vcc
                v_mov_b32 v2, 0xdddddddd
                """)
            if s == 8:
                a(f"""
                s_lshl_b32 {T0}, {sJ}, 3
                s_add_u32 {T0}, {T0}, {sGX}
                s_lshl_b32 {T0}, {T0}, 7
                s_lshl_b32 {T1}, {sW}, 2
                s_add_u32 {T0}, {T0}, {T1}
                s_add_u32 {T0}, {T0}, {WS_KVFLAG}
                v_mov_b32 v124, {sTAG}
                """)
        a.waith(hKV)
        self.flag_store("v124", vL16, T0, "sc1")
        for T in range(2):
            for i in range(4):
                a(f"v_fma_f32 v{aQ[T] + i}, v{98 + 2 * T}, v{aQ[T] + i}, v{48 + 4 * T + i}")
        for i in range(8):
            a(f"v_mul_f32 v{32 + i}, {f2u(QSCALE)}, v{32 + i}")
        a("""
        v_cvt_pk_bf16_f32 v64, v32, v33
        v_cvt_pk_bf16_f32 v65, v34, v35
        v_cvt_pk_bf16_f32 v66, v36, v37
        v_cvt_pk_bf16_f32 v67, v38, v39
        v_permlane16_swap_b32 v64, v66
        v_permlane16_swap_b32 v65, v67
        """)
        a.wait(lg=0)
        a("s_barrier")
        self.stamp("B0")
        if self.stop == "qkv":
            a(f"""
            s_lshl_b32 {T0}, {sW}, 5
            s_add_u32 {T0}, {T0}, {sJ}
            s_lshl_b32 {T0}, {T0}, 10
            s_add_u32 {T0}, {T0}, {sGRP}
            buffer_store_dwordx4 v[64:67], {vL16}, {sWS}, {T0} offen
            """)
            return self.finish()
        self.attention()
        if self.stop == "attn":
            return self.finish()
        self.post()
        return self.finish()

    def scale_block(self, nparts, Wp, Wu, sG, vout, lds_out):
        a = self.a
        base = self.sb_tmp if hasattr(self, "sb_tmp") else 20
        GS = lambda sp: base + 4 * sp
        ACC = lambda p: base + 8 + 4 * p
        GF = lambda sp: base + 20 + 8 * sp
        g, t0, t1, a1, a2 = self.sb_regs if hasattr(self, "sb_regs") else ("v16", 18, 19, "v1", "v2")
        a(f"""
        v_lshlrev_b32 v{t0}, 16, {g}
        v_and_b32 v{t1}, 0xffff0000, {g}
        v_lshl_add_u32 {a1}, v0, 3, {sG}
        v_lshl_add_u32 {a2}, v0, 2, {sG}
        ds_write_b64 {a1}, v[{t0}:{t1}]
        ds_write_b32 {a2}, {g} offset:512
        v_lshl_add_u32 {a1}, v7, 5, {sG}
        v_and_b32 {a2}, 1, v0
        v_lshlrev_b32 {a2}, 7, {a2}
        v_lshl_add_u32 {a2}, v7, 4, {a2}
        v_add_u32 {a2}, {sG}, {a2}
        """)
        for sp in range(2):
            a(f"ds_read_b128 {vr(GF(sp))}, {a1} offset:{sp * 128}")
            a(f"ds_read_b128 {vr(GF(sp) + 4)}, {a1} offset:{sp * 128 + 16}")
        for sp in range(2):
            a(f"ds_read_b128 {vr(GS(sp))}, {a2} offset:{512 + sp * 64}")
        for sp in range(2):
            for p in range(nparts):
                u = Wu(sp, p)
                for i in range(4):
                    a(f"v_pk_mul_f32 {vr(u + 2 * i, 2)}, {vr(u + 2 * i, 2)}, {vr(GF(sp) + 2 * i, 2)}")
                for i in range(4):
                    a(f"v_cvt_pk_bf16_f32 v{u + i}, v{u + 2 * i}, v{u + 2 * i + 1}")
                if lds_out:
                    a(f"ds_write_b128 {vout}, {vr(u)} offset:{(sp * nparts + p) * 1024}")
        for sp in range(2):
            for p in range(nparts):
                c = "0" if sp == 0 else vr(ACC(p))
                a(f"v_mfma_f32_16x16x32_bf16 {vr(ACC(p))}, {vr(GS(sp))}, {vr(Wp(sp, p))}, {c}")
        a(f"""
        s_lshl_b32 {T1}, {sW}, 3
        s_add_u32 {T1}, {T1}, {L_UBP}
        v_lshl_add_u32 {a1}, v8, 6, {T1}
        """)
        for p in range(nparts):
            a(f"ds_write_b64 {a1}, {vr(ACC(p), 2)} offset:{p * 1024}")

    def attention(self):
        a = self.a
        vL16 = "v6"
        S = (16, 32)
        O, Q, K, V2 = 48, 64, 68, 72
        V1 = (76, 80)
        base = {"v3": 0, "v4": 0, "v5": 0}

        def rd(dst, addr, t):
            off = t * KVS - base[addr]
            if off > 65535:
                a(f"v_add_u32 {addr}, {off}, {addr}")
                base[addr] += off
                off = 0
            return a(f"ds_read_b128 {vr(dst)}, {addr} offset:{off}")

        def kv_dma(chunk, col):
            a(f"""
            s_add_u32 {T0}, {sGX}, {chunk}
            s_and_b32 {T0}, {T0}, 7
            s_lshl_b32 {T0}, {T0}, 3
            s_add_u32 {T0}, {T0}, {col}
            s_lshl_b32 {T0}, {T0}, 11
            s_add_u32 {T0}, {T0}, {sKVB}
            s_mul_i32 {T1}, {col}, {KVS}
            s_add_u32 m0, {T1}, {chunk * 8 * KVS}
            """)
            self.dma(vL16, sWS, T0, sc="sc1")
            return self.dma(vL16, sWS, T0, off=1024, sc="sc1")

        H = {}
        side = {}

        def at(t, fn):
            side.setdefault(t, []).append(fn)

        def s0_poll():
            a(f"s_cmp_ge_u32 {sW}, 4")
            a("s_cbranch_scc1 L_s0skip")
            s0 = a.snap()
            a(f"""
            v_and_b32 v1, 7, v0
            v_lshlrev_b32 v1, 7, v1
            v_bfe_u32 v84, v0, 3, 1
            v_lshl_add_u32 v1, v84, 4, v1
            s_lshl_b32 {T0}, {sJ}, 10
            s_lshl_b32 {T1}, {sW}, 2
            s_add_u32 {T0}, {T0}, {T1}
            s_add_u32 {T0}, {T0}, {WS_KVFLAG}
            """)
            self.poll(f"buffer_load_dword v84, v1, {sWS}, {T0} offen sc1", ["v84"])
            a(f"s_add_u32 {T2}, {sW}, 4")
            for ch in (1, 2):
                kv_dma(ch, sW)
                H[ch] = kv_dma(ch, T2)
            a("s_setprio 0")
            a.merge(s0)
            a.L("L_s0skip")

        at(3, s0_poll)
        for c in range(1, 8):
            def bar(c=c):
                a.waith(H[c], *H.get(("extra", c), []))
                a.wait(lg=0)
                a("s_barrier")
                a("s_setprio 3")
                if c + 2 < 8:
                    H[c + 2] = kv_dma(c + 2, sW)
            at(8 * c - 2, bar)
            at(8 * c + 2, lambda: a("s_setprio 2"))
            at(8 * c + 4, lambda: a("s_setprio 1"))
            at(8 * c + 5, lambda: a("s_setprio 0"))
        self.side_work(at, H)

        a(f"""
        v_and_b32 v1, 7, v0
        v_mul_u32_u24 v1, {8 * KVS}, v1
        s_mul_i32 {T1}, {sW}, {KVS}
        v_add_u32 v1, {T1}, v1
        """)
        rd(K, "v3", 0)
        rd(V1[0], "v4", 0)
        rd(V1[1], "v4", 1)
        a("ds_write_b128 v1, v[120:123] offset:2048")
        a(f"s_cmp_ge_u32 {sW}, 4")
        a(f"s_cbranch_scc1 L_prio0")
        a("s_setprio 1")
        a.L("L_prio0")
        for i in range(16):
            a(f"v_mov_b32 v{O + i}, 0")
        a(f"v_mfma_f32_32x32x16_bf16 {vr(S[0], 16)}, {vr(K)}, {vr(Q)}, 0")
        rd(K, "v3", 1)
        for t in range(64):
            Sa, Sb = S[t & 1], S[(t + 1) & 1]
            a.C(f"tile {t}")
            for fn in side.get(t, []):
                fn()
            e = lambda i: a(f"v_exp_f32 v{Sa + i}, v{Sa + i}")
            e(0)
            if t > 0 and len(a.lg) > 1:
                a.wait(lg=1)
            e(1)
            if t > 0:
                a(f"v_smfmac_f32_32x32x32_bf16 {vr(O, 16)}, {vr(V2)}, {vr(Sb + 8, 8)}, v2")
            rd(V2, "v5", t)
            for i in (2, 3, 4):
                e(i)
            if t + 1 < 64:
                a(f"v_mfma_f32_32x32x16_bf16 {vr(Sb, 16)}, {vr(K)}, {vr(Q)}, 0")
                if t + 2 < 64:
                    rd(K, "v3", t + 2)
            for i in (5, 6, 7, 8, 9):
                e(i)
            a(f"v_smfmac_f32_32x32x32_bf16 {vr(O, 16)}, {vr(V1[t & 1])}, {vr(Sa, 8)}, v2")
            if t + 2 < 64:
                rd(V1[t & 1], "v4", t + 2)
            for i in range(10, 16):
                e(i)
        a(f"v_smfmac_f32_32x32x32_bf16 {vr(O, 16)}, {vr(V2)}, {vr(S[1] + 8, 8)}, v2")
        a("s_setprio 0")
        a(f"""
        s_mov_b32 s82, 0
        s_mov_b32 s83, -1
        s_mov_b32 {T0}, {f2u(2.0 ** -40)}
        s_mov_b32 {T1}, {f2u(2.0 ** 40)}
        v_cndmask_b32 v16, v{O + 8}, v{O + 12}, s[82:83]
        v_cmp_nle_f32 vcc, {T0}, v16
        v_cmp_nge_f32 s[82:83], {T1}, v16
        s_or_b64 vcc, vcc, s[82:83]
        """)
        if self.force_slow:
            a("s_branch L_slow")
        else:
            a("s_cbranch_vccnz L_slow")
        self.slow_state = a.snap()
        self.slow_base = dict(base)
        a.L("L_attn_done")
        self.stamp("attn")
        a(f"""
        v_rcp_f32 v16, v16
        s_lshl_b32 {T0}, {sW}, 5
        s_add_u32 {T0}, {T0}, {sJ}
        s_lshl_b32 {T0}, {T0}, 10
        s_add_u32 {T0}, {T0}, {sGRP}
        """)
        for i in range(8):
            a(f"v_mul_f32 v{O + i}, v16, v{O + i}")
        for i in range(4):
            a(f"v_cvt_pk_bf16_f32 v{20 + i}, v{O + 2 * i}, v{O + 2 * i + 1}")
        a(f"""
        s_lshr_b32 {T1}, {sW}, 1
        s_lshl_b32 {T1}, {T1}, 8
        s_lshl_b32 {T2}, {sJ}, 3
        s_add_u32 {T1}, {T1}, {T2}
        s_and_b32 {T2}, {sW}, 1
        s_lshl_b32 {T2}, {T2}, 2
        s_add_u32 {T1}, {T1}, {T2}
        s_add_u32 {T1}, {T1}, {sGRP}
        s_add_u32 {T1}, {T1}, {G_OFLAG}
        v_mov_b32 v17, {sTAG}
        """)

        def st(sc):
            a(f"buffer_store_dwordx4 v[20:23], {vL16}, {sWS}, {T0} offen {sc}")
            a.wait(vm=0)
            self.flag_store("v17", vL16, T1, sc)
        self.pub(st)

    def slow_path(self):
        a = self.a
        a.restore(self.slow_state)
        O, Q, K, V2, V1 = 48, 64, 68, 72, 76
        a.L("L_slow")
        a.wait(vm=0, lg=0)
        for r in ("v3", "v4", "v5"):
            a(f"v_subrev_u32 {r}, {self.slow_base[r]}, {r}")
        a(f"""
        v_mov_b32 v32, 0xff800000
        v_mov_b32 v1, v3
        s_mov_b32 {T0}, 64
        L_slow1:
        ds_read_b128 {vr(K)}, v1
        v_add_u32 v1, {KVS}, v1
        v_mfma_f32_32x32x16_bf16 v[16:31], {vr(K)}, {vr(Q)}, 0
        """)
        for i in range(8):
            a(f"v_max3_f32 v32, v32, v{16 + 2 * i}, v{17 + 2 * i}")
        a(f"""
        s_sub_u32 {T0}, {T0}, 1
        s_cmp_lg_u32 {T0}, 0
        s_cbranch_scc1 L_slow1
        v_mov_b32 v33, v32
        v_permlane32_swap_b32 v32, v33
        v_max_f32 v32, v32, v33
        v_sub_f32 v32, 0, v32
        """)
        for i in range(1, 16):
            a(f"v_mov_b32 v{32 + i}, v32")
        for i in range(16):
            a(f"v_mov_b32 v{O + i}, 0")
        a(f"""
        s_mov_b32 {T0}, 64
        L_slow2:
        ds_read_b128 {vr(K)}, v3
        ds_read_b128 {vr(V1)}, v4
        ds_read_b128 {vr(V2)}, v5
        v_add_u32 v3, {KVS}, v3
        v_add_u32 v4, {KVS}, v4
        v_add_u32 v5, {KVS}, v5
        s_waitcnt lgkmcnt(0)
        v_mfma_f32_32x32x16_bf16 v[16:31], {vr(K)}, {vr(Q)}, v[32:47]
        """)
        for i in range(16):
            a(f"v_exp_f32 v{16 + i}, v{16 + i}")
        a(f"""
        v_smfmac_f32_32x32x32_bf16 {vr(O, 16)}, {vr(V1)}, v[16:23], v2
        v_smfmac_f32_32x32x32_bf16 {vr(O, 16)}, {vr(V2)}, v[24:31], v2
        s_sub_u32 {T0}, {T0}, 1
        s_cmp_lg_u32 {T0}, 0
        s_cbranch_scc1 L_slow2
        s_mov_b32 s82, 0
        s_mov_b32 s83, -1
        v_cndmask_b32 v16, v{O + 8}, v{O + 12}, s[82:83]
        s_branch L_attn_done
        """)

    def side_work(self, at, H):
        a = self.a
        vL16 = "v6"
        X = {}

        def pf_issue():
            a(f"""
            s_sub_u32 {sTASK}, 255, s2
            s_lshl_b32 {T3}, {sW}, 11
            s_add_u32 {T3}, {T3}, {L_PF}
            s_mov_b32 s55, 0x20000
            v_lshrrev_b32 v84, 1, v0
            v_and_b32 v85, 1, v0
            v_lshlrev_b32 v85, 4, v85
            s_cmp_ge_u32 {sTASK}, 86
            s_cbranch_scc1 L_pf_n1
            s_mov_b32 s52, s12
            s_mov_b32 s53, s13
            s_mov_b32 s54, {512 * 2752}
            v_mul_u32_u24 v84, 2752, v84
            v_add_u32 v84, v84, v85
            s_mul_i32 {T0}, {sW}, {64 * 2752}
            s_lshl_b32 {T1}, {sTASK}, 5
            s_add_u32 {T0}, {T0}, {T1}
            s_add_u32 {T1}, {T0}, {32 * 2752}
            s_lshl_b32 {sPFD}, {sTASK}, 14
            s_add_u32 {sPFD}, {sPFD}, {WS_W1F - L_PF}
            s_add_u32 {sPFD}, {sPFD}, {T3}
            v_lshlrev_b32 v86, 8, v7
            v_lshl_add_u32 v86, v8, 3, v86
            v_add_u32 v87, 128, v86
            v_add_u32 v88, 1024, v86
            v_add_u32 v89, 1024, v87
            s_branch L_pf_go
            L_pf_n1:
            s_cmp_ge_u32 {sTASK}, 172
            s_cbranch_scc1 L_pf_n2
            s_mov_b32 s52, s14
            s_mov_b32 s53, s15
            s_mov_b32 s54, {1376 * 1024}
            v_lshrrev_b32 v84, 3, v0
            v_and_b32 v85, 7, v0
            v_lshlrev_b32 v85, 4, v85
            v_lshl_add_u32 v84, v84, 10, v85
            s_sub_u32 {T2}, {sTASK}, 86
            s_lshl_b32 {T0}, {T2}, 14
            s_lshl_b32 {T1}, {sW}, 7
            s_add_u32 {T0}, {T0}, {T1}
            s_add_u32 {T1}, {T0}, 8192
            s_mul_i32 {sPFD}, {sW}, {86 * 2048}
            s_lshl_b32 {T2}, {T2}, 11
            s_add_u32 {sPFD}, {sPFD}, {T2}
            s_add_u32 {sPFD}, {sPFD}, {WS_W2F}
            v_lshrrev_b32 v86, 5, v0
            v_bfe_u32 v87, v0, 2, 2
            v_lshl_add_u32 v86, v86, 3, v87
            v_lshlrev_b32 v86, 7, v86
            v_and_b32 v87, 1, v7
            v_lshl_add_u32 v86, v87, 5, v86
            v_and_b32 v87, 3, v0
            v_lshl_add_u32 v86, v87, 3, v86
            v_add_u32 v87, 512, v86
            v_add_u32 v88, 64, v86
            v_add_u32 v89, 64, v87
            s_branch L_pf_go
            L_pf_n2:
            s_mov_b32 s52, s8
            s_mov_b32 s53, s9
            s_mov_b32 s54, {512 * 1024}
            v_lshl_add_u32 v84, v84, 10, v85
            s_sub_u32 {T2}, {sTASK}, 172
            s_lshl_b32 {T0}, {sW}, 16
            s_lshl_b32 {T1}, {T2}, 5
            s_add_u32 {T0}, {T0}, {T1}
            s_add_u32 {T1}, {T0}, {32 * 1024}
            s_lshl_b32 {sPFD}, {T2}, 14
            s_add_u32 {sPFD}, {sPFD}, {(WS_WOF - L_PF) & 0xffffffff}
            s_add_u32 {sPFD}, {sPFD}, {T3}
            v_lshrrev_b32 v86, 5, v0
            v_lshlrev_b32 v86, 9, v86
            v_and_b32 v87, 31, v0
            v_lshl_add_u32 v86, v87, 3, v86
            v_add_u32 v87, 256, v86
            v_add_u32 v88, 1024, v86
            v_add_u32 v89, 1024, v87
            L_pf_go:
            s_mov_b32 m0, {T3}
            v_add_u32 v86, {T3}, v86
            """)
            self.dma("v84", sPF, T0)
            a(f"s_add_u32 m0, {T3}, 1024")
            a(f"v_add_u32 v87, {T3}, v87")
            X["pf"] = self.dma("v84", sPF, T1)
            a(f"v_add_u32 v88, {T3}, v88")
            a(f"v_add_u32 v89, {T3}, v89")

        def pf_do():
            a.waith(X["pf"])
            a("""
            ds_read_b64_tr_b16 v[128:129], v86
            ds_read_b64_tr_b16 v[130:131], v87
            ds_read_b64_tr_b16 v[132:133], v88
            ds_read_b64_tr_b16 v[134:135], v89
            """)
            a(f"s_cmp_ge_u32 {sTASK}, 86")
            a("s_cbranch_scc1 L_pf_plain")
            s0 = a.snap()
            a(f"""
            s_lshl_b32 {T0}, {sW}, 8
            s_add_u32 {T0}, {T0}, {WS_MODG + 768 * 8}
            s_lshl_b32 {T2}, {sW}, 10
            s_add_u32 {T2}, {T2}, {L_G}
            """)
            self.poll(f"buffer_load_dwordx2 v[84:85], v13, {sWS}, {T0} offen sc1", ["v85"])
            for i in range(8):
                a(f"v_lshlrev_b32 v{136 + 2 * i}, 16, v{128 + i}")
                a(f"v_and_b32 v{137 + 2 * i}, 0xffff0000, v{128 + i}")
            self.sb_tmp = 152
            self.sb_regs = ("v84", 86, 87, "v88", "v89")
            self.scale_block(1, lambda sp, p: 128 + 4 * sp, lambda sp, p: 136 + 8 * sp, T2, None, lds_out=False)
            for i in range(4):
                a(f"v_mov_b32 v{128 + i}, v{136 + i}")
                a(f"v_mov_b32 v{132 + i}, v{144 + i}")
            a.merge(s0)
            a.L("L_pf_plain")
            a.wait(lg=0)
            a(f"s_cmp_ge_u32 {sTASK}, 204")
            a("s_cbranch_scc1 L_pf_none")
            s0 = a.snap()
            a(f"buffer_store_dwordx4 v[128:131], {vL16}, {sWS}, {sPFD} offen sc1")
            h = a(f"buffer_store_dwordx4 v[132:135], {vL16}, {sWS}, {sPFD} offen offset:1024 sc1")
            H[("extra", 3)] = [h]
            a.merge(s0)
            a.L("L_pf_none")

        def pf_flag():
            a(f"s_cmp_lg_u32 {sW}, 0")
            a("s_cbranch_scc1 L_pf_noflag")
            s0 = a.snap()
            a(f"s_cmp_ge_u32 {sTASK}, 86")
            a("s_cbranch_scc1 L_pf_noub")
            s1 = a.snap()
            a(f"v_lshlrev_b32 v84, 6, v8")
            a(f"v_add_u32 v84, {L_UBP}, v84")
            for i in range(4):
                a(f"ds_read_b128 {vr(128 + 4 * i)}, v84 offset:{16 * i}")
            a(f"""
            v_pk_add_f32 v[128:129], v[128:129], v[130:131]
            v_pk_add_f32 v[132:133], v[132:133], v[134:135]
            v_pk_add_f32 v[136:137], v[136:137], v[138:139]
            v_pk_add_f32 v[140:141], v[140:141], v[142:143]
            v_pk_add_f32 v[128:129], v[128:129], v[132:133]
            v_pk_add_f32 v[136:137], v[136:137], v[140:141]
            v_pk_add_f32 v[128:129], v[128:129], v[136:137]
            v_lshlrev_b32 v84, 2, v8
            s_lshl_b32 {T0}, {sTASK}, 7
            s_add_u32 {T0}, {T0}, {WS_UB2}
            buffer_store_dword v128, v84, {sWS}, {T0} offen sc1
            buffer_store_dword v129, v84, {sWS}, {T0} offen offset:64 sc1
            """)
            a.wait(vm=0)
            a.merge(s1)
            a.L("L_pf_noub")
            a(f"""
            s_getreg_b32 {T1}, hwreg(HW_REG_XCC_ID, 0, 4)
            s_xor_b32 {T1}, {T1}, {sTAG}
            v_mov_b32 v84, {T1}
            s_lshl_b32 {T0}, {sGX}, 5
            s_add_u32 {T0}, {T0}, {sJ}
            s_lshl_b32 {T0}, {T0}, 2
            s_add_u32 {T0}, {T0}, {WS_PFLAG}
            """)
            self.flag_store("v84", vL16, T0, "sc1")
            a.merge(s0)
            a.L("L_pf_noflag")

        def pf_poll():
            lab, done = a.newlabel("L_poll"), a.newlabel("L_polld")
            a(f"s_mov_b32 {sSPIN}, 0x40000")
            a(f"s_mov_b32 {T0}, {WS_PFLAG}")
            a.L(lab)
            a(f"buffer_load_dwordx4 v[84:87], {vL16}, {sWS}, {T0} offen sc1")
            a(f"s_sub_u32 {sSPIN}, {sSPIN}, 1")
            a(f"s_cbranch_scc1 {done}")
            a.wait(vm=0)
            for i in range(4):
                a(f"v_xor_b32 v{84 + i}, {sTAG}, v{84 + i}")
            a("""
            v_or3_b32 v88, v84, v85, v86
            v_or_b32 v88, v88, v87
            v_cmp_lt_u32 vcc, 15, v88
            """)
            a(f"s_cbranch_vccnz {lab}")
            a.L(done)
            a.wait(vm=0)
            a(f"""
            s_getreg_b32 {T1}, hwreg(HW_REG_XCC_ID, 0, 4)
            v_and_b32 v89, v84, v85
            v_and_b32 v90, v86, v87
            v_and_b32 v89, v89, v90
            v_cmp_ne_u32 vcc, {T1}, v88
            v_cmp_ne_u32 s[82:83], {T1}, v89
            s_or_b64 vcc, vcc, s[82:83]
            s_lshl_b32 {T0}, {sGX}, 3
            s_lshr_b64 s[82:83], vcc, {T0}
            s_and_b32 {T0}, s82, 0xff
            s_cselect_b32 {sLOC}, 0, 1
            """)
            if self.force_safe:
                a(f"s_mov_b32 {sLOC}, 0")
            a(f"""
            s_mul_i32 {T0}, {sCG}, 11
            s_cmp_eq_u32 {sCG}, 7
            s_cselect_b32 {T0}, 76, {T0}
            s_lshl_b32 {T1}, {sW}, 1
            s_add_u32 {sU0}, {T0}, {T1}
            s_add_u32 {sU1}, {sU0}, 1
            s_add_u32 {T1}, {T0}, {sW}
            s_add_u32 {T1}, {T1}, 4
            s_min_u32 {T1}, {T1}, 85
            s_lshl_b32 {T2}, {sCG}, 2
            s_add_u32 {T2}, {T2}, {sW}
            s_sub_u32 {T2}, {T2}, 4
            s_lshl_b32 {T2}, {T2}, 14
            s_add_u32 {T2}, {T2}, {WS_WOF}
            s_lshl_b32 {sB0}, {sU0}, 14
            s_add_u32 {sB0}, {sB0}, {WS_W1F}
            s_cmp_ge_u32 {sW}, 4
            s_cselect_b32 {sB0}, {T2}, {sB0}
            s_cselect_b32 {sU1}, {T1}, {sU1}
            s_cselect_b32 {sU0}, {T1}, {sU0}
            s_lshl_b32 {sB1}, {sU1}, 14
            s_add_u32 {sB1}, {sB1}, {WS_W1F}
            """)

        def wload(i):
            def f():
                for sb, rb in ((sB0, 128), (sB1, 192)):
                    for k in range(4):
                        o = f" offset:{k * 1024}" if k else ""
                        a(f"buffer_load_dwordx4 {vr(rb + (4 * i + k) * 4)}, {vL16}, {sWS}, {sb} offen{o} sc1")
                    a(f"s_add_u32 {sb}, {sb}, 4096")
            return f

        def small_loads():
            a(f"""
            v_lshlrev_b32 v84, 4, v7
            s_lshl_b32 {T0}, {sU0}, 7
            s_add_u32 {T0}, {T0}, {WS_UB2}
            s_lshl_b32 {T1}, {sU1}, 7
            s_add_u32 {T1}, {T1}, {WS_UB2}
            buffer_load_dwordx4 v[104:107], v84, {sWS}, {T0} offen sc1
            buffer_load_dwordx4 v[108:111], v84, {sWS}, {T0} offen offset:64 sc1
            buffer_load_dwordx4 v[112:115], v84, {sWS}, {T1} offen sc1
            buffer_load_dwordx4 v[116:119], v84, {sWS}, {T1} offen offset:64 sc1
            s_lshl_b32 {T2}, {sCG}, 2
            s_and_b32 {T0}, {sW}, 3
            s_add_u32 {T2}, {T2}, {T0}
            s_lshl_b32 {T0}, {T2}, 6
            s_add_u32 {T0}, {T0}, {WS_MODG + 512 * 8}
            buffer_load_dwordx4 v[100:103], v84, {sWS}, {T0} offen sc1
            v_and_b32 v85, 7, v0
            v_lshlrev_b32 v85, 5, v85
            s_lshl_b32 {T0}, {sCG}, 8
            s_add_u32 {T0}, {T0}, {WS_MODG + 1280 * 8}
            buffer_load_dwordx4 v[120:123], v85, {sWS}, {T0} offen sc1
            buffer_load_dwordx4 v[124:127], v85, {sWS}, {T0} offen offset:16 sc1
            v_lshlrev_b32 v85, 10, v8
            v_lshl_add_u32 v85, v7, 3, v85
            s_lshl_b32 {T0}, {sGX}, 18
            s_lshl_b32 {T1}, {sTQ}, 16
            s_add_u32 {T0}, {T0}, {T1}
            s_lshl_b32 {T2}, {T2}, 5
            s_add_u32 {T0}, {T0}, {T2}
            """)
            for T in range(4):
                a(f"buffer_load_dwordx2 {vr(92 + 2 * T, 2)}, v85, {sX}, {T0} offen")
                if T < 3:
                    a(f"s_add_u32 {T0}, {T0}, 16384")

        at(7, pf_issue)
        at(15, pf_do)
        at(23, pf_flag)
        at(31, pf_poll)
        at(33, wload(0))
        at(39, wload(1))
        at(47, wload(2))
        at(55, wload(3))
        at(57, small_loads)

    def post(self):
        a = self.a
        vL16 = "v6"
        a("s_barrier")
        a(f"""
        v_and_b32 v1, 7, v0
        v_lshlrev_b32 v1, 2, v1
        s_lshl_b32 {T0}, {sTQ}, 8
        s_lshl_b32 {T1}, {sW}, 5
        s_add_u32 {T0}, {T0}, {T1}
        s_add_u32 {T0}, {T0}, {sGRP}
        s_add_u32 {T0}, {T0}, {G_OFLAG}
        s_lshl_b32 {T2}, {sTQ}, 16
        s_lshl_b32 {T3}, {sW}, 12
        s_add_u32 {T2}, {T2}, {T3}
        s_add_u32 {T2}, {T2}, {sGRP}
        """)
        self.poll(f"buffer_load_dword v16, v1, {sWS}, {T0} offen sc1", ["v16"])
        self.stamp("oflag")

        def tile_dma(ldsb, goff):
            for tt in range(2):
                a(f"s_add_u32 m0, {T3}, {ldsb + tt * 32768}")
                a(f"s_add_u32 {T0}, {T2}, {goff + tt * 32768}")
                for k in range(4):
                    h = self.dma(vL16, sWS, T0, off=k * 1024, sc="sc1")
            return h

        h = tile_dma(L_O, G_O)
        a(f"""
        v_lshlrev_b32 v9, 9, v7
        v_lshl_add_u32 v9, v8, 4, v9
        v_add_u32 v10, {L_X1}, v9
        """)
        a.waith(h)
        a("s_barrier")
        self.stamp("oland")
        a(f"s_cmp_lt_u32 {sW}, 4")
        a("s_cbranch_scc1 L_noC")
        s0 = a.snap()
        BUF = lambda s, T: 16 + ((s % 3) * 4 + T) * 4
        ACC = lambda T: 64 + 4 * T

        def aread(addr, s):
            for T in range(4):
                a(f"ds_read_b128 {vr(BUF(s, T))}, {addr} offset:{(T >> 1) * 32768 + s * 2048 + (T & 1) * 256}")

        aread("v9", 0)
        aread("v9", 1)
        for s in range(16):
            if s + 2 < 16:
                aread("v9", s + 2)
            for T in range(4):
                c = "0" if s == 0 else vr(ACC(T))
                a(f"v_mfma_f32_16x16x32_bf16 {vr(ACC(T))}, {vr(128 + 4 * s)}, {vr(BUF(s, T))}, {c}")
            if s == 4:
                a("""
                v_and_b32 v101, 0xffff0000, v100
                v_lshlrev_b32 v100, 16, v100
                v_and_b32 v103, 0xffff0000, v102
                v_lshlrev_b32 v102, 16, v102
                """)
            if s in (6, 8):
                for i in range(4):
                    k = (s - 6) * 2 + i
                    a(f"v_lshlrev_b32 v{128 + 2 * k}, 16, v{92 + k}")
                    a(f"v_and_b32 v{129 + 2 * k}, 0xffff0000, v{92 + k}")
            if s == 10:
                a(f"""
                s_lshl_b32 {T4}, {sCG}, 2
                s_add_u32 {T4}, {T4}, {sW}
                s_sub_u32 {T4}, {T4}, 4
                s_lshl_b32 {T0}, {T4}, 10
                s_lshl_b32 {T1}, {sTQ}, 16
                s_add_u32 {T0}, {T0}, {T1}
                s_add_u32 {T0}, {T0}, {sGRP}
                s_add_u32 {T0}, {T0}, {G_X1}
                s_add_u32 {T5}, {T0}, 32768
                s_lshl_b32 {T4}, {T4}, 2
                s_lshl_b32 {T1}, {sTQ}, 8
                s_add_u32 {T1}, {T1}, {T4}
                s_add_u32 {T1}, {T1}, {sGRP}
                s_add_u32 {T1}, {T1}, {G_X1FLAG}
                v_mov_b32 v1, {sTAG}
                """)
        for T in range(4):
            for i in range(2):
                a(f"v_pk_fma_f32 {vr(ACC(T) + 2 * i, 2)}, {vr(ACC(T) + 2 * i, 2)}, {vr(100 + 2 * i, 2)}, {vr(128 + 4 * T + 2 * i, 2)}")
        for T in range(4):
            for i in range(2):
                a(f"v_cvt_pk_bf16_f32 v{16 + 2 * T + i}, v{ACC(T) + 2 * i}, v{ACC(T) + 2 * i + 1}")
        a("""
        v_permlane16_swap_b32 v16, v18
        v_permlane16_swap_b32 v17, v19
        v_permlane16_swap_b32 v20, v22
        v_permlane16_swap_b32 v21, v23
        """)

        def st(sc):
            a(f"buffer_store_dwordx4 v[16:19], {vL16}, {sWS}, {T0} offen {sc}")
            a(f"buffer_store_dwordx4 v[20:23], {vL16}, {sWS}, {T5} offen {sc}")
            a.wait(vm=0)
            self.flag_store("v1", vL16, T1, sc)
        self.pub(st)
        a.merge(s0)
        a.L("L_noC")
        self.stamp("cdone")
        a(f"""
        v_and_b32 v1, 3, v0
        v_lshlrev_b32 v1, 2, v1
        s_lshl_b32 {T0}, {sTQ}, 8
        s_lshl_b32 {T1}, {sW}, 4
        s_add_u32 {T0}, {T0}, {T1}
        s_add_u32 {T0}, {T0}, {sGRP}
        s_add_u32 {T0}, {T0}, {G_X1FLAG}
        """)
        self.poll(f"buffer_load_dword v24, v1, {sWS}, {T0} offen sc1", ["v24"])
        h = tile_dma(L_X1, G_X1)
        a(f"""
        s_lshr_b32 {T0}, {sW}, 2
        s_lshl_b32 {T0}, {T0}, 15
        s_and_b32 {T1}, {sW}, 3
        s_lshl_b32 {T1}, {T1}, 7
        s_add_u32 {T0}, {T0}, {T1}
        s_add_u32 {T0}, {T0}, {L_X1}
        v_and_b32 v1, 7, v0
        v_lshrrev_b32 v2, 3, v0
        v_lshlrev_b32 v11, 4, v1
        v_lshl_add_u32 v11, v2, 9, v11
        v_add_u32 v11, {T0}, v11              ; stats
        v_lshlrev_b32 v3, 4, v2
        v_lshl_add_u32 v3, v1, 9, v3
        s_lshl_b32 {T1}, {sCG}, 12
        s_add_u32 {T0}, {T0}, {T1}
        v_add_u32 v3, {T0}, v3
        s_mul_i32 {T0}, {sW}, 11
        s_cmp_eq_u32 {sW}, 7
        s_cselect_b32 {T4}, 76, {T0}
        s_mul_i32 {sW2B}, {sCG}, {86 * 2048}
        s_lshl_b32 {T0}, {T4}, 11
        s_add_u32 {sW2B}, {sW2B}, {T0}
        s_add_u32 {sW2B}, {sW2B}, {WS_W2F}
        """)
        a.waith(h)
        a("s_barrier")
        self.stamp("x1land")
        for i in range(8):
            a(f"ds_read_b128 {vr(16 + 4 * i)}, v11 offset:{i * 4096}")
        a("ds_read_b128 v[12:15], v3")
        a("""
        v_mov_b32 v1, 0x3f803f80
        v_mov_b32 v96, 0
        v_mov_b32 v97, 0
        v_mov_b32 v98, 0
        v_mov_b32 v99, 0
        """)
        for i in range(32):
            a(f"v_dot2_f32_bf16 v{96 + 2 * (i & 1)}, v{16 + i}, v1, v{96 + 2 * (i & 1)}")
            a(f"v_dot2_f32_bf16 v{97 + 2 * (i & 1)}, v{16 + i}, v{16 + i}, v{97 + 2 * (i & 1)}")
        BUF = lambda s, T: 16 + ((s % 3) * 4 + T) * 4
        aread("v10", 0)
        aread("v10", 1)
        a(f"""
        v_pk_add_f32 v[96:97], v[96:97], v[98:99]
        s_lshl_b32 {T0}, {sW}, 6
        s_add_u32 {T0}, {T0}, {L_ST2}
        v_add_f32_dpp v96, v96, v96 row_ror:8 row_mask:0xf bank_mask:0xf
        v_add_f32_dpp v97, v97, v97 row_ror:8 row_mask:0xf bank_mask:0xf
        v_mov_b32 v98, v96
        v_mov_b32 v99, v97
        v_permlane16_swap_b32 v96, v98
        v_permlane16_swap_b32 v97, v99
        v_pk_add_f32 v[96:97], v[96:97], v[98:99]
        v_mov_b32 v98, v96
        v_mov_b32 v99, v97
        v_permlane32_swap_b32 v96, v98
        v_permlane32_swap_b32 v97, v99
        v_pk_add_f32 v[96:97], v[96:97], v[98:99]
        v_mul_f32 v96, {f2u(1.0 / 512)}, v96
        v_mul_f32 v98, v96, v96
        v_mul_f32 v97, {f2u(1.0 / 512)}, v97
        v_sub_f32 v98, v97, v98
        """)
        a(f"""
        v_max_f32 v98, 0, v98
        v_add_f32 v98, {f2u(1e-5)}, v98
        v_rsq_f32 v98, v98
        v_and_b32 v1, 7, v0
        v_lshl_add_u32 v1, v1, 3, {T0}
        v_mul_f32 v99, v96, v98
        v_sub_f32 v99, 0, v99
        ds_write_b64 v1, v[98:99]
        """)
        ACC2 = lambda i, T: 64 + 16 * i + 4 * T

        def w2load(ks, f):
            rb = 128 + 64 * f + 4 * ks
            o = (ks & 1) * 2048 + f * 1024
            a(f"buffer_load_dwordx4 {vr(rb)}, {vL16}, {sWS}, {sW2B} offen offset:{o} sc1")

        def dloop(sets):
            for s in range(16):
                if s + 2 < 16:
                    aread("v10", s + 2)
                for i in sets:
                    for T in range(4):
                        c = "0" if s == 0 else vr(ACC2(i, T))
                        a(f"v_mfma_f32_16x16x32_bf16 {vr(ACC2(i, T))}, {vr(128 + 64 * i + 4 * s)}, {vr(BUF(s, T))}, {c}")
                if s < 11:
                    w2load(s, 0)
                    w2load(s, 1)
                    if s & 1:
                        a(f"s_add_u32 {sW2B}, {sW2B}, 4096")

        def depi(i, ub):
            for T in range(4):
                for k in range(2):
                    t = vr(48 + 2 * k, 2)
                    a(f"v_pk_fma_f32 {t}, {vr(40 + 2 * T, 2)}, {vr(ub + 2 * k, 2)}, {vr(ub + 4 + 2 * k, 2)} op_sel:[1,0,0] op_sel_hi:[1,1,1]")
                for k in range(2):
                    t = vr(48 + 2 * k, 2)
                    acc = vr(ACC2(i, T) + 2 * k, 2)
                    a(f"v_pk_fma_f32 {acc}, {vr(40 + 2 * T, 2)}, {acc}, {t} op_sel_hi:[0,1,1]")
                for k in range(2):
                    a(f"v_cvt_pk_bf16_f32 v{16 + 8 * i + 2 * T + k}, v{ACC2(i, T) + 2 * k}, v{ACC2(i, T) + 2 * k + 1}")
                for k in range(2):
                    r = 16 + 8 * i + 2 * T + k
                    a(f"v_pk_max_i16 v{r}, v{r}, 0")
            b = 16 + 8 * i
            a(f"""
            v_permlane16_swap_b32 v{b}, v{b + 2}
            v_permlane16_swap_b32 v{b + 1}, v{b + 3}
            v_permlane16_swap_b32 v{b + 4}, v{b + 6}
            v_permlane16_swap_b32 v{b + 5}, v{b + 7}
            """)

        def dtail():
            a.wait(lg=0)
            a("s_barrier")
            a(f"v_lshlrev_b32 v1, 3, v8")
            a(f"v_add_u32 v1, {L_ST2}, v1")
            for T in range(4):
                a(f"ds_read_b64 {vr(40 + 2 * T, 2)}, v1 offset:{T * 128}")
            a(f"""
            s_mul_i32 {T0}, {sTQ}, {2 * 86 * 1024}
            s_add_u32 {T0}, {T0}, {sGRP}
            s_add_u32 {T2}, {T0}, {G_HID}
            s_lshl_b32 {T0}, {sU0}, 10
            s_add_u32 {T0}, {T0}, {T2}
            s_add_u32 {T5}, {T0}, {86 * 1024}
            s_lshl_b32 {T1}, {sTQ}, 3
            s_add_u32 {T1}, {T1}, {sCG}
            s_lshl_b32 {T1}, {T1}, 3
            s_add_u32 {T1}, {T1}, {sW}
            s_lshl_b32 {T1}, {T1}, 2
            s_add_u32 {T1}, {T1}, {sGRP}
            s_add_u32 {T1}, {T1}, {G_HFLAG}
            v_mov_b32 v2, {sTAG}
            """)

        a(f"s_cmp_ge_u32 {sW}, 4")
        a("s_cbranch_scc1 L_dB")
        s0 = a.snap()
        dloop((0, 1))
        dtail()
        depi(0, 104)
        depi(1, 112)

        def stA(sc):
            a(f"buffer_store_dwordx4 v[16:19], {vL16}, {sWS}, {T0} offen {sc}")
            a(f"buffer_store_dwordx4 v[20:23], {vL16}, {sWS}, {T5} offen {sc}")
            a(f"buffer_store_dwordx4 v[24:27], {vL16}, {sWS}, {T0} offen offset:1024 {sc}")
            a(f"buffer_store_dwordx4 v[28:31], {vL16}, {sWS}, {T5} offen offset:1024 {sc}")
            a.wait(vm=0)
            self.flag_store("v2", vL16, T1, sc)
        self.pub(stA)
        a("s_branch L_dDone")
        s1 = a.snap()
        a.restore(s0)
        a.L("L_dB")
        dloop((1,))
        dtail()
        depi(1, 112)
        a(f"""
        s_cmp_lt_u32 {sCG}, 6
        s_cselect_b32 {T3}, 7, 6
        """)

        def stB(sc):
            lab = a.newlabel("L_nost")
            a(f"s_cmp_ge_u32 {sW}, {T3}")
            a(f"s_cbranch_scc1 {lab}")
            a(f"buffer_store_dwordx4 v[24:27], {vL16}, {sWS}, {T0} offen {sc}")
            a(f"buffer_store_dwordx4 v[28:31], {vL16}, {sWS}, {T5} offen {sc}")
            a.L(lab)
            a.wait(vm=0)
            self.flag_store("v2", vL16, T1, sc)
        self.pub(stB)
        a.merge(s1)
        a.L("L_dDone")
        self.stamp("ddone")
        a(f"""
        v_and_b32 v1, 7, v0
        v_lshlrev_b32 v1, 2, v1
        s_lshl_b32 {T0}, {sTQ}, 3
        s_add_u32 {T0}, {T0}, {sW}
        s_lshl_b32 {T0}, {T0}, 5
        s_add_u32 {T0}, {T0}, {sGRP}
        s_add_u32 {T0}, {T0}, {G_HFLAG}
        s_lshl_b32 {T4}, {T4}, 10
        s_add_u32 {T2}, {T2}, {T4}
        """)
        self.poll(f"buffer_load_dword v32, v1, {sWS}, {T0} offen sc1", ["v32"])
        self.stamp("hflag")
        ring = [80 + 4 * i for i in range(10)] + [172 + 4 * i for i in range(5)] + [236 + 4 * i for i in range(5)]
        HB = lambda tt, ks: ring[(tt * 11 + ks) % 20]

        def hload(n):
            tt, ks = divmod(n, 11)
            if ks % 4 == 0:
                a(f"s_add_u32 {T0}, {T2}, {tt * 86 * 1024 + ks * 1024}")
            o = f" offset:{(ks % 4) * 1024}" if ks % 4 else ""
            a(f"buffer_load_dwordx4 {vr(HB(tt, ks))}, {vL16}, {sWS}, {T0} offen{o} sc1")

        for n in range(20):
            hload(n)
        EA = lambda tt, f: 16 + 32 * tt + 16 * f
        a(f"""
        v_and_b32 v1, 31, v0
        v_mul_u32_u24 v1, {RED_ROW}, v1
        v_lshrrev_b32 v2, 5, v0
        v_lshl_add_u32 v1, v2, 4, v1
        s_mul_i32 {T1}, {sW}, {RED_W}
        v_add_u32 v9, {T1}, v1
        v_lshrrev_b32 v2, 3, v0
        v_and_b32 v3, 7, v0
        v_mul_u32_u24 v1, {RED_ROW}, v2
        v_lshl_add_u32 v1, v3, 5, v1
        s_mul_i32 {T1}, {sW}, {8 * RED_ROW}
        v_add_u32 v10, {T1}, v1
        v_add_u32 v11, {4 * RED_W}, v10
        v_lshlrev_b32 v2, 10, v2
        v_lshl_add_u32 v4, v3, 4, v2
        """)

        def pwrite(tt, n):
            f, q = divmod(n, 4)
            a(f"ds_write_b128 v9, {vr(EA(tt, f) + 4 * q)} offset:{tt * 32 * RED_ROW + f * 128 + q * 32}")

        for tt in range(2):
            for ks in range(11):
                if ks == 10:
                    lab = a.newlabel("L_k10")
                    a(f"s_cmp_ge_u32 {sW}, 6")
                    a(f"s_cbranch_scc1 {lab}")
                    sk = a.snap()
                for f in range(2):
                    c = "0" if ks == 0 else vr(EA(tt, f), 16)
                    a(f"v_mfma_f32_32x32x16_bf16 {vr(EA(tt, f), 16)}, {vr(128 + 64 * f + 4 * ks)}, {vr(HB(tt, ks))}, {c}")
                if ks == 10:
                    a.merge(sk)
                    a.L(lab)
                if tt == 0 and ks < 2:
                    hload(20 + ks)
                if tt == 1 and 2 <= ks < 10:
                    pwrite(0, ks - 2)
        for n in range(8):
            pwrite(1, n)
        for i in range(4):
            a(f"v_and_b32 v{121 + 2 * i}, 0xffff0000, v{120 + 2 * i}")
            a(f"v_lshlrev_b32 v{120 + 2 * i}, 16, v{120 + 2 * i}")
            a(f"v_lshlrev_b32 v{128 + 2 * i}, 16, v{12 + i}")
            a(f"v_and_b32 v{129 + 2 * i}, 0xffff0000, v{12 + i}")
        a(f"""
        s_lshl_b32 {T0}, {sGX}, 18
        s_lshl_b32 {T1}, {sTQ}, 16
        s_add_u32 {T0}, {T0}, {T1}
        s_lshl_b32 {T1}, {sW}, 13
        s_add_u32 {T0}, {T0}, {T1}
        s_lshl_b32 {T1}, {sCG}, 7
        s_add_u32 {T0}, {T0}, {T1}
        """)
        a.wait(lg=0)
        a("s_barrier")
        self.stamp("edone")
        for src in range(8):
            ad = "v10" if src < 4 else "v11"
            a(f"ds_read_b128 {vr(16 + 8 * src)}, {ad} offset:{(src & 3) * RED_W}")
            a(f"ds_read_b128 {vr(20 + 8 * src)}, {ad} offset:{(src & 3) * RED_W + 16}")
        for src in range(1, 8):
            for k in range(4):
                a(f"v_pk_add_f32 {vr(16 + 2 * k, 2)}, {vr(16 + 2 * k, 2)}, {vr(16 + 8 * src + 2 * k, 2)}")
        for k in range(4):
            a(f"v_pk_fma_f32 {vr(16 + 2 * k, 2)}, {vr(16 + 2 * k, 2)}, {vr(120 + 2 * k, 2)}, {vr(128 + 2 * k, 2)}")
        for k in range(4):
            a(f"v_cvt_pk_bf16_f32 v{24 + k}, v{16 + 2 * k}, v{17 + 2 * k}")
        a(f"buffer_store_dwordx4 v[24:27], v4, {sOUT}, {T0} offen")

    def finish(self):
        a = self.a
        a(f"s_or_b32 {T0}, s2, {sW}")
        a(f"s_cmp_lg_u32 {T0}, 0")
        a("s_cbranch_scc1 L_fin")
        a(f"v_mov_b32 v1, {sTAG}")
        self.flag_store("v1", "v6", "0", "sc1")
        a.L("L_fin")
        if self.stamps:
            a.wait(vm=0)
            self.stamp("end")
            a(f"""
            s_lshl_b32 {T0}, s2, 3
            s_add_u32 {T0}, {T0}, {sW}
            s_lshl_b32 {T0}, {T0}, 7
            s_add_u32 {T0}, {T0}, {WS_STAMP}
            """)
            for i in range(16):
                a(f"v_mov_b32 v{16 + i}, s{STAMP0 + i}")
            a("v_mov_b32 v32, s100")
            a("s_mov_b64 exec, 1")
            for i in range(4):
                a(f"buffer_store_dwordx4 {vr(16 + 4 * i)}, v6, {sWS}, {T0} offen offset:{16 * i}")
            a(f"buffer_store_dword v32, v6, {sWS}, {T0} offen offset:64")
        a.L("L_end")
        a("s_endpgm")
        if hasattr(self, "slow_state"):
            self.slow_path()
        n = a.fix_hazards()
        return n


HEADER = """; Fused adaLN-conditioned block (LN+modulate -> MHA -> gated residual -> LN+modulate -> ReLU FFN -> gated residual)
; Kernarg: 0 A_x | 8 A_wqkv | 16 A_wo | 24 B_x | 32 B_w1 | 40 B_w2 | 48 c | 56 w_mod | 64 out | 72 debug | 80 ws
; @launch grid=(256,1,1) block=(512,1,1) lds=163840
.amdgcn_target "amdgcn-amd-amdhsa--gfx950"
.text
.globl {name}_kernel
.p2align 8
.type {name}_kernel,@function
{name}_kernel:
"""
FOOTER = """
    s_endpgm
L_code_end:
.p2align 8
.fill {pad}, 4, 0xbf810000
.section .rodata,"a"
.p2align 6
.amdhsa_kernel {name}_kernel
  .amdhsa_next_free_vgpr 256
  .amdhsa_next_free_sgpr 102
  .amdhsa_accum_offset 256
  .amdhsa_group_segment_fixed_size 0
  .amdhsa_kernarg_size 88
  .amdhsa_user_sgpr_count 2
  .amdhsa_user_sgpr_kernarg_segment_ptr 1
  .amdhsa_system_sgpr_workgroup_id_x 1
.end_amdhsa_kernel
"""


def generate(**kw):
    g = Gen(**kw)
    n = g.build()
    txt = HEADER.format(name=NAME) + g.a.text() + FOOTER.format(name=NAME, pad=64)
    return txt, g


if __name__ == "__main__":
    import argparse
    ap = argparse.ArgumentParser()
    ap.add_argument("-o", default=f"cdna_kernels/{NAME}.s")
    ap.add_argument("--stamps", action="store_true")
    ap.add_argument("--stop", default=None)
    ap.add_argument("--safe", action="store_true")
    ap.add_argument("--slow", action="store_true")
    args = ap.parse_args()
    txt, g = generate(stamps=args.stamps, stop=args.stop, force_safe=args.safe, force_slow=args.slow)
    open(args.o, "w").write(txt)
    print("wrote", args.o, len(txt), "bytes;", len(g.a.ins), "lines; stamps:", g.stamp_names)
```

```python
import sys, os, math, struct
sys.path.insert(0, os.path.dirname(os.path.abspath(__file__)))
from asmlib import Asm

NAME = "adaLN_cond__softmax_full_mha__dense_activation_relu__prompt"

WS_EPOCH = 0
WS_MODG = 0x1000
WS_STATG = 0x4000
WS_PFLAG = 0xC000
WS_UB2 = 0xD000
WS_KVFLAG = 0x10000
WS_WOF = 0x20000
WS_W1F = 0xA0000
WS_W2F = 0x200000
WS_KV = 0x400000
WS_GRP = 0x800000
G_O, G_X1, G_HID = 0, 0x40000, 0x80000
G_OFLAG, G_X1FLAG, G_HFLAG = 0x130000, 0x130400, 0x130800
WS_STAMP = 0x1800000
WS_SIZE = 0x1900000

KVS = 2064
L_WM = 0x0
L_X = 0x8000
L_W = 0x18000
L_PF = 0x20400
L_SC = 0x24400
L_P = 0x24800
L_G = 0x24C00
L_UBP = 0x26C00
L_ST2 = 0x27C00
L_O = 0x0
L_X1 = 0x10000
RED_ROW = 272
RED_W = 64 * RED_ROW
LDS_SIZE = 163840

sW = "s3"
sX, sWQ, sWM, sC, sWS, sOUT, sPF, sCODE = ("s[28:31]", "s[32:35]", "s[36:39]", "s[40:43]", "s[44:47]",
                                           "s[48:51]", "s[52:55]", "s[56:59]")
sGX, sJ, sTAG, sTQ, sCG, sGRP, sLOC, sSPIN = ("s60", "s61", "s62", "s63", "s64", "s65", "s66", "s67")
sKVB, sB0, sB1, sTASK, sPFD, sU0, sU1, sW2B = ("s68", "s69", "s70", "s71", "s72", "s73", "s74", "s75")
T0, T1, T2, T3, T4, T5 = ("s76", "s77", "s78", "s79", "s80", "s81")
STAMP0 = 84

QSCALE = 0.25 * math.log2(math.e)
LOG2E = math.log2(math.e)


def f2u(x):
    return "0x%08x" % struct.unpack("<I", struct.pack("<f", x))[0]


def vr(b, n=4):
    return f"v[{b}:{b + n - 1}]"


class Gen:
    def __init__(self, stamps=False, stop=None, force_safe=False, force_slow=False, sgrp=0, **opt):
        self.sgrp = sgrp
        self.opt = opt
        self.a = Asm()
        self.stamps = stamps
        self.stop = stop
        self.force_safe = force_safe
        self.force_slow = force_slow
        self.nstamp = 0
        self.stamp_names = []

    def stamp(self, name, grp=0):
        if not self.stamps:
            return
        if name not in ("entry", "end") and grp != self.sgrp and not (isinstance(grp, tuple) and self.sgrp in grp):
            return
        a = self.a
        assert self.nstamp < 16
        a("s_memtime s[82:83]")
        a.wait(lg=0)
        a(f"s_mov_b32 s{STAMP0 + self.nstamp}, s82")
        self.nstamp += 1
        self.stamp_names.append(name)

    def srd(self, dst, lo, size):
        d = int(dst[2:].split(":")[0])
        self.a(f"""
        s_mov_b32 s{d}, s{lo}
        s_mov_b32 s{d + 1}, s{lo + 1}
        s_mov_b32 s{d + 2}, {size}
        s_mov_b32 s{d + 3}, 0x20000""")

    def dma(self, vaddr, srd, soff, off=0, sc=""):
        o = f" offset:{off}" if off else ""
        return self.a(f"buffer_load_dwordx4 {vaddr}, {srd}, {soff} offen{o} {sc} lds")

    def poll(self, load, cmps):
        a = self.a
        lab, done = a.newlabel("L_poll"), a.newlabel("L_polld")
        a(f"s_mov_b32 {sSPIN}, 0x40000")
        a.L(lab)
        a(load)
        a(f"s_sub_u32 {sSPIN}, {sSPIN}, 1")
        a(f"s_cbranch_scc1 {done}")
        a.wait(vm=0)
        a(f"v_cmp_ne_u32 vcc, {sTAG}, {cmps[0]}")
        for c in cmps[1:]:
            a(f"v_cmp_ne_u32 s[82:83], {sTAG}, {c}")
            a("s_or_b64 vcc, vcc, s[82:83]")
        a(f"s_cbranch_vccnz {lab}")
        a.L(done)
        a.wait(vm=0)

    def pub(self, fn):
        a = self.a
        ls, ld = a.newlabel("L_safe"), a.newlabel("L_pubd")
        a(f"s_cmp_eq_u32 {sLOC}, 0")
        a(f"s_cbranch_scc1 {ls}")
        s0 = a.snap()
        fn("")
        a(f"s_branch {ld}")
        s1 = a.snap()
        a.restore(s0)
        a.L(ls)
        fn("sc1")
        a.merge(s1)
        a.L(ld)

    def flag_store(self, vtmp, voff, soff, sc):
        a = self.a
        a(f"s_mov_b64 exec, 1")
        a(f"buffer_store_dword {vtmp}, {voff}, {sWS}, {soff} offen {sc}")
        a(f"s_mov_b64 exec, -1")

    def build(self):
        a = self.a
        a("s_cmp_ge_u32 s2, 256")
        a("s_cbranch_scc1 L_end")
        if self.stamps:
            a("s_memrealtime s[100:101]")
            self.stamp("entry")
        a("""
        s_load_dwordx16 s[4:19], s[0:1], 0
        s_load_dwordx4 s[20:23], s[0:1], 64
        s_load_dwordx2 s[24:25], s[0:1], 80
        s_getpc_b64 s[56:57]
        L_pc:
        v_lshrrev_b32 v1, 6, v0
        v_and_b32 v0, 63, v0
        v_readfirstlane_b32 s3, v1
        """)
        a(f"""
        s_and_b32 {sGX}, s2, 7
        s_lshr_b32 {sJ}, s2, 3
        s_and_b32 s57, s57, 0xffff
        s_mov_b32 s58, L_code_end-L_pc
        s_mov_b32 s59, 0x20000
        v_lshlrev_b32 v6, 4, v0
        """)
        vL16 = "v6"
        a("""
        v_lshrrev_b32 v7, 4, v0             ; g4
        v_and_b32 v8, 15, v0                ; n
        v_lshrrev_b32 v1, 2, v0
        v_and_b32 v2, 3, v0
        v_mul_u32_u24 v1, 6144, v1
        v_lshl_add_u32 v9, v2, 4, v1
        v_lshrrev_b32 v1, 1, v0
        v_and_b32 v2, 1, v0
        v_mul_u32_u24 v1, 3072, v1
        v_lshl_add_u32 v10, v2, 4, v1
        v_lshrrev_b32 v1, 3, v0
        v_and_b32 v2, 7, v0
        v_xor_b32 v2, v2, v7
        v_lshlrev_b32 v1, 10, v1
        v_lshl_add_u32 v11, v2, 4, v1
        v_xor_b32 v12, 64, v11              ; (rh=1)
        v_lshlrev_b32 v13, 1, v0            ; c voffset
        """)
        vG4, vN = "v7", "v8"
        a.wait(lg=0)
        hE = a(f"s_load_dword {sTAG}, s[24:25], 0")
        self.srd(sWM, 18, 512 * 6144)
        self.srd(sC, 16, 1024)
        self.srd(sX, 4, 2048 * 1024)
        a("s_cmp_ge_u32 s2, 96")
        a("s_cbranch_scc1 L_noprod1")
        s0 = a.snap()
        a(f"s_lshl_b32 {T0}, {sW}, 7")
        hC = a(f"buffer_load_ushort v16, v13, {sC}, {T0} offen")
        a(f"""
        s_mul_i32 {T0}, {sW}, {64 * 6144}
        s_lshl_b32 {T1}, s2, 6
        s_add_u32 {T0}, {T0}, {T1}
        s_lshl_b32 {T1}, {sW}, 12
        """)
        for i in range(4):
            a(f"s_add_u32 m0, {T1}, {L_WM + i * 1024}")
            hWM = self.dma("v9", sWM, T0)
            if i < 3:
                a(f"s_add_u32 {T0}, {T0}, {16 * 6144}")
        a.merge(s0)
        a.L("L_noprod1")
        a(f"""
        s_lshl_b32 {T0}, {sGX}, 18
        s_lshl_b32 {T1}, {sJ}, 13
        s_add_u32 {T2}, {T0}, {T1}
        s_lshl_b32 {T1}, {sW}, 10
        s_add_u32 {T2}, {T2}, {T1}
        """)
        a(f"buffer_load_dwordx4 v[20:23], {vL16}, {sX}, {T2} offen")
        self.srd(sWQ, 6, 512 * 3072)
        a(f"""
        s_mul_i32 {T2}, {sW}, {64 * 3072}
        s_lshl_b32 {T1}, {sJ}, 5
        s_add_u32 {T2}, {T2}, {T1}
        s_mul_i32 {T3}, {sW}, 6144
        """)
        for sp in range(2):
            a(f"s_add_u32 m0, {T3}, {L_W + sp * 3072}")
            for p in range(3):
                hW = self.dma("v10", sWQ, T2, off=p * 1024)
            if sp == 0:
                a(f"s_add_u32 {T2}, {T2}, {32 * 3072}")
        a(f"s_cmp_lg_u32 {sW}, 7")
        a("s_cbranch_scc1 L_nopf")
        s0 = a.snap()
        a(f"""
        v_lshlrev_b32 v1, 7, v8
        s_lshl_b32 {T1}, {sJ}, 11
        buffer_load_dword v19, v1, {sCODE}, {T1} offen
        """)
        a.merge(s0)
        a.L("L_nopf")
        XF = lambda T, s: 128 + (s * 2 + T) * 4
        a(f"""
        s_lshl_b32 {T1}, {sW}, 15
        s_add_u32 {T4}, {T0}, {T1}
        s_lshl_b32 {T5}, {sW}, 13
        s_add_u32 {T5}, {T5}, {L_X}
        """)
        hx = {}

        def x_issue(q):
            kk, T = q >> 1, q & 1
            for rh in range(2):
                a(f"s_add_u32 m0, {T5}, {(q & 3) * 2048 + rh * 1024}")
                a(f"s_add_u32 {T1}, {T4}, {(16 * T + 8 * rh) * 1024 + kk * 128}")
                hx[q] = self.dma("v11" if rh == 0 else "v12", sX, T1)

        for q in range(4):
            x_issue(q)
        self.srd(sWS, 24, WS_SIZE)
        self.srd(sOUT, 20, 2048 * 1024)
        a(f"""
        v_lshrrev_b32 v1, 1, {vN}
        v_xor_b32 v1, v1, {vG4}
        v_lshlrev_b32 v1, 4, v1
        v_lshl_add_u32 v1, {vN}, 7, v1
        v_add_u32 v14, {T5}, v1
        v_xor_b32 v15, 64, v14
        """)
        a.waith(hE)
        a(f"""
        s_mul_i32 {sTAG}, {sTAG}, 0x41c64e6d
        s_add_u32 {sTAG}, {sTAG}, 0x3c6ef35f
        s_lshr_b32 {sTQ}, {sJ}, 3
        s_and_b32 {sCG}, {sJ}, 7
        s_lshl_b32 {sGRP}, {sGX}, 21
        s_add_u32 {sGRP}, {sGRP}, {WS_GRP}
        """)
        a("s_cmp_ge_u32 s2, 96")
        a("s_cbranch_scc1 L_noprod2")
        s0 = a.snap()
        a(f"""
        v_lshlrev_b32 v16, 16, v16
        v_mul_f32 v17, {f2u(-LOG2E)}, v16
        v_exp_f32 v17, v17
        s_lshl_b32 {T0}, {sW}, 7
        s_add_u32 {T0}, {T0}, {L_SC}
        v_add_f32 v17, 1.0, v17
        v_rcp_f32 v17, v17
        v_add_u32 v1, {T0}, v13
        v_mul_f32 v16, v16, v17
        v_cvt_pk_bf16_f32 v16, v16, v16
        ds_write_b16 v1, v16
        v_lshrrev_b32 v2, 5, v0             ; h
        v_lshlrev_b32 v1, 4, v2
        v_add_u32 v1, {T0}, v1
        """)
        for i in range(4):
            a(f"ds_read_b128 {vr(24 + 4 * i)}, v1 offset:{32 * i}")
        a(f"""
        v_bfe_u32 v3, v0, 2, 2
        v_lshl_add_u32 v3, v2, 3, v3
        v_lshlrev_b32 v3, 6, v3
        v_and_b32 v4, 1, {vG4}
        v_lshl_add_u32 v3, v4, 5, v3
        v_and_b32 v4, 3, v0
        v_lshl_add_u32 v3, v4, 3, v3
        s_lshl_b32 {T0}, {sW}, 12
        v_add_u32 v3, {T0}, v3
        """)
        a.waith(hWM)
        for i in range(4):
            a(f"ds_read_b64_tr_b16 {vr(40 + 4 * i, 2)}, v3 offset:{L_WM + 1024 * i}")
            a(f"ds_read_b64_tr_b16 {vr(42 + 4 * i, 2)}, v3 offset:{L_WM + 1024 * i + 256}")
        for i in range(4):
            c = "0" if i == 0 else vr(56, 16)
            a(f"v_mfma_f32_32x32x16_bf16 {vr(56, 16)}, {vr(24 + 4 * i)}, {vr(40 + 4 * i)}, {c}")
        a(f"""
        v_and_b32 v1, 31, v0
        v_lshlrev_b32 v1, 5, v1
        s_lshl_b32 {T0}, {sW}, 2
        s_add_u32 {T0}, {T0}, {L_P}
        v_add_u32 v1, {T0}, v1
        ds_write_b32 v1, v56
        """)
        a.wait(lg=0)
        a("s_barrier")
        a(f"s_cmp_lg_u32 {sW}, 0")
        a("s_cbranch_scc1 L_noprod2")
        s1 = a.snap()
        a(f"v_lshlrev_b32 v1, 6, {vN}")
        a(f"v_add_u32 v1, {L_P}, v1")
        for i in range(4):
            a(f"ds_read_b128 {vr(24 + 4 * i)}, v1 offset:{16 * i}")
        a(f"""
        v_pk_add_f32 v[24:25], v[24:25], v[26:27]
        v_pk_add_f32 v[28:29], v[28:29], v[30:31]
        v_pk_add_f32 v[32:33], v[32:33], v[34:35]
        v_pk_add_f32 v[36:37], v[36:37], v[38:39]
        v_pk_add_f32 v[24:25], v[24:25], v[28:29]
        v_pk_add_f32 v[32:33], v[32:33], v[36:37]
        v_add_f32 v24, v24, v25
        v_add_f32 v32, v32, v33
        v_cvt_pk_bf16_f32 v24, v24, v32
        s_lshr_b32 {T0}, s2, 4
        s_cmp_eq_u32 {T0}, 1
        s_cselect_b32 {T1}, 1.0, 0
        s_cmp_eq_u32 {T0}, 4
        s_cselect_b32 {T1}, 1.0, {T1}
        v_lshlrev_b32 v26, 16, v24
        v_and_b32 v27, 0xffff0000, v24
        v_add_f32 v26, {T1}, v26
        v_add_f32 v27, {T1}, v27
        v_cvt_pk_bf16_f32 v24, v26, v27
        v_mov_b32 v25, {sTAG}
        v_lshlrev_b32 v1, 3, v0
        s_lshl_b32 {T0}, s2, 7
        s_add_u32 {T0}, {T0}, {WS_MODG}
        s_mov_b64 exec, 0xffff
        buffer_store_dwordx2 v[24:25], v1, {sWS}, {T0} offen sc1
        s_mov_b64 exec, -1
        """)
        a.merge(s0)
        a.merge(s1)
        a.L("L_noprod2")
        self.stamp("modpub")
        for i in range(4):
            a(f"v_lshlrev_b32 v{24 + 2 * i}, 16, v{20 + i}")
            a(f"v_and_b32 v{25 + 2 * i}, 0xffff0000, v{20 + i}")
        a("""
        v_pk_add_f32 v[32:33], v[24:25], v[26:27]
        v_pk_add_f32 v[34:35], v[28:29], v[30:31]
        v_pk_add_f32 v[32:33], v[32:33], v[34:35]
        v_add_f32 v32, v32, v33
        """)

        def wave_sum(v):
            for m in ("row_shr:1 row_mask:0xf", "row_shr:2 row_mask:0xf", "row_shr:4 row_mask:0xf",
                      "row_shr:8 row_mask:0xf", "row_bcast:15 row_mask:0xa", "row_bcast:31 row_mask:0xc"):
                a(f"v_add_f32_dpp {v}, {v}, {v} {m} bank_mask:0xf")

        wave_sum("v32")
        a(f"v_mul_f32 v32, {f2u(1.0 / 512)}, v32")
        a(f"v_readlane_b32 {T0}, v32, 63")
        for i in range(8):
            a(f"v_subrev_f32 v{24 + i}, {T0}, v{24 + i}")
        a("v_mul_f32 v33, v24, v24")
        for i in range(1, 8):
            a(f"v_fmac_f32 v33, v{24 + i}, v{24 + i}")
        wave_sum("v33")
        a(f"""
        v_mov_b32 v34, {f2u(1e-5)}
        v_fmac_f32 v34, {f2u(1.0 / 512)}, v33
        v_rsq_f32 v34, v34
        v_mov_b32 v33, {sTAG}
        v_mov_b32 v35, {sTAG}
        s_lshl_b32 {T0}, {sGX}, 8
        s_lshl_b32 {T1}, {sJ}, 3
        s_add_u32 {T0}, {T0}, {T1}
        s_add_u32 {T0}, {T0}, {sW}
        s_lshl_b32 {T0}, {T0}, 4
        s_add_u32 {T0}, {T0}, {WS_STATG - 63 * 16}
        s_mov_b32 exec_lo, 0
        s_mov_b32 exec_hi, 0x80000000
        buffer_store_dwordx4 v[32:35], {vL16}, {sWS}, {T0} offen sc1
        s_mov_b64 exec, -1
        """)
        Wp = lambda sp, p: 104 + (sp * 3 + p) * 4
        Wu = lambda sp, p: 56 + (sp * 3 + p) * 8
        a(f"""
        v_lshlrev_b32 v1, 8, {vG4}
        v_lshl_add_u32 v1, {vN}, 3, v1      ; (8*g4 + r)*32 + cc*8
        s_mul_i32 {T0}, {sW}, 6144
        s_add_u32 {T0}, {T0}, {L_W}
        v_add_u32 v1, {T0}, v1
        v_add_u32 v5, {T0}, {vL16}
        """)
        a.waith(hW)
        for sp in range(2):
            for p in range(3):
                o = (sp * 3 + p) * 1024
                a(f"ds_read_b64_tr_b16 {vr(Wp(sp, p), 2)}, v1 offset:{o}")
                a(f"ds_read_b64_tr_b16 {vr(Wp(sp, p) + 2, 2)}, v1 offset:{o + 128}")
        for i in range(24):
            a(f"v_lshlrev_b32 v{56 + 2 * i}, 16, v{104 + i}")
            a(f"v_and_b32 v{57 + 2 * i}, 0xffff0000, v{104 + i}")
        for q in range(16):
            kk, T = q >> 1, q & 1
            a.waith(hx[q])
            a(f"ds_read_b128 {vr(XF(T, 2 * kk))}, v14 offset:{(q & 3) * 2048}")
            h = a(f"ds_read_b128 {vr(XF(T, 2 * kk + 1))}, v15 offset:{(q & 3) * 2048}")
            if q + 4 < 16:
                a.waith(h)
                x_issue(q + 4)
        self.stamp("xdone")
        a(f"""
        v_and_b32 v1, 31, v0
        v_lshrrev_b32 v2, 5, v0
        v_xor_b32 v2, 1, v2
        v_lshl_add_u32 v1, v2, 8, v1
        v_lshlrev_b32 v13, 3, v1
        s_lshl_b32 {T0}, {sW}, 8
        s_add_u32 {T0}, {T0}, {WS_MODG}
        s_lshl_b32 {T2}, {sW}, 10
        s_add_u32 {T2}, {T2}, {L_G}
        """)
        self.poll(f"buffer_load_dwordx2 v[16:17], v13, {sWS}, {T0} offen sc1", ["v17"])
        self.stamp("modgot")
        a(f"""
        s_lshl_b32 {T0}, {sGX}, 12
        s_lshl_b32 {T1}, {sW}, 9
        s_add_u32 {T0}, {T0}, {T1}
        s_add_u32 {T0}, {T0}, {WS_STATG}
        v_and_b32 v12, 0x1f0, {vL16}
        """)
        self.scale_block(3, Wp, Wu, T2, "v5", lds_out=True)
        self.poll(f"buffer_load_dwordx4 v[16:19], v12, {sWS}, {T0} offen sc1", ["v17", "v19"])
        a(f"""
        v_mul_f32 v16, v16, v18
        v_sub_f32 v16, 0, v16
        v_and_b32 v1, 31, v0
        v_lshl_add_u32 v1, v1, 2, {T2}
        ds_write_b32 v1, v18 offset:512
        ds_write_b32 v1, v16 offset:640
        """)
        a.wait(lg=0)
        a("s_barrier")
        self.stamp("wready")
        a(f"v_lshlrev_b32 v1, 6, v0")
        a(f"v_add_u32 v1, {L_UBP}, v1")
        for i in range(4):
            a(f"ds_read_b128 {vr(16 + 4 * i)}, v1 offset:{16 * i}")
        a(f"v_add_u32 v9, {L_W}, {vL16}")
        WB = lambda s, i: 56 + ((s % 3) * 2 + i) * 4

        def wread(s, parts):
            for i, p in enumerate(parts):
                a(f"ds_read_b128 {vr(WB(s, i))}, v9 offset:{s * 3072 + p * 1024}")

        wread(0, (1, 2))
        wread(1, (1, 2))
        a("""
        v_pk_add_f32 v[16:17], v[16:17], v[18:19]
        v_pk_add_f32 v[20:21], v[20:21], v[22:23]
        v_pk_add_f32 v[24:25], v[24:25], v[26:27]
        v_pk_add_f32 v[28:29], v[28:29], v[30:31]
        v_pk_add_f32 v[16:17], v[16:17], v[20:21]
        v_pk_add_f32 v[24:25], v[24:25], v[28:29]
        v_pk_add_f32 v[16:17], v[16:17], v[24:25]
        """)
        a(f"""
        v_lshl_add_u32 v1, v0, 2, {T2}
        ds_write_b32 v1, v16
        ds_write_b32 v1, v17 offset:256
        v_lshl_add_u32 v1, {vG4}, 4, {T2}
        v_lshl_add_u32 v2, {vN}, 2, {T2}
        ds_read_b128 v[80:83], v1               ; u_q
        ds_read_b128 v[84:87], v1 offset:256    ; b_q
        ds_read_b128 v[88:91], v1 offset:64     ; u_k
        ds_read_b128 v[92:95], v1 offset:320    ; b_k
        ds_read2_b32 v[96:97], v2 offset0:32 offset1:96    ; u_v, b_v
        ds_read2_b32 v[98:99], v2 offset0:128 offset1:160  ; r, mr (T0)
        ds_read2_b32 v[100:101], v2 offset0:144 offset1:176 ; r, mr (T1)
        ds_read_b128 v[104:107], v1 offset:512  ; r tokens T0
        ds_read_b128 v[108:111], v1 offset:576  ; r tokens T1
        ds_read_b128 v[112:115], v1 offset:640
        ds_read_b128 v[116:119], v1 offset:704
        """)
        aK, aV, aQ = (16, 20), (24, 28), (32, 36)
        for s in range(16):
            if s + 2 < 16:
                wread(s + 2, (1, 2))
            for T in range(2):
                c = "0" if s == 0 else vr(aK[T])
                a(f"v_mfma_f32_16x16x32_bf16 {vr(aK[T])}, {vr(WB(s, 0))}, {vr(XF(T, s))}, {c}")
            for T in range(2):
                c = "0" if s == 0 else vr(aV[T])
                a(f"v_mfma_f32_16x16x32_bf16 {vr(aV[T])}, {vr(XF(T, s))}, {vr(WB(s, 1))}, {c}")
            if s == 6:
                for T in range(2):
                    for i in range(4):
                        a(f"v_fma_f32 v{40 + 4 * T + i}, v{99 + 2 * T}, v{88 + i}, v{92 + i}")
            if s == 8:
                for i in range(8):
                    a(f"v_fma_f32 v{112 + i}, v{112 + i}, v96, v97")
            if s == 10:
                for T in range(2):
                    for i in range(4):
                        a(f"v_fma_f32 v{48 + 4 * T + i}, v{99 + 2 * T}, v{80 + i}, v{84 + i}")
            if s == 12:
                a(f"""
                v_bfe_u32 v1, v0, 2, 2
                v_bfe_u32 v2, v0, 4, 1
                v_lshl_add_u32 v1, v1, 1, v2
                v_and_b32 v2, 0x23, v0
                v_lshl_add_u32 v1, v1, 2, v2
                v_lshlrev_b32 v10, 4, v1
                s_lshl_b32 {sKVB}, {sJ}, 17
                s_add_u32 {sKVB}, {sKVB}, {WS_KV}
                s_lshl_b32 {T0}, {sGX}, 3
                s_add_u32 {T0}, {T0}, {sW}
                s_lshl_b32 {T0}, {T0}, 11
                s_add_u32 {T0}, {T0}, {sKVB}
                s_mul_i32 {T1}, {sW}, {KVS}
                v_add_u32 v11, {T1}, v10
                v_add_u32 v12, {T1}, {vL16}
                """)
        WQ = lambda s: 56 + (s % 6) * 4
        for s in range(4):
            a(f"ds_read_b128 {vr(WQ(s))}, v9 offset:{s * 3072}")
        for T in range(2):
            for i in range(4):
                a(f"v_fma_f32 v{aK[T] + i}, v{98 + 2 * T}, v{aK[T] + i}, v{40 + 4 * T + i}")
        a("""
        v_cvt_pk_bf16_f32 v40, v16, v17
        v_cvt_pk_bf16_f32 v41, v18, v19
        v_cvt_pk_bf16_f32 v42, v20, v21
        v_cvt_pk_bf16_f32 v43, v22, v23
        """)
        for i in range(8):
            a(f"v_fma_f32 v{24 + i}, v{104 + i}, v{24 + i}, v{112 + i}")
        a("""
        v_permlane16_swap_b32 v40, v42
        v_permlane16_swap_b32 v41, v43
        v_cvt_pk_bf16_f32 v44, v24, v25
        v_cvt_pk_bf16_f32 v45, v26, v27
        v_cvt_pk_bf16_f32 v46, v28, v29
        v_cvt_pk_bf16_f32 v47, v30, v31
        """)
        a(f"buffer_store_dwordx4 v[40:43], v10, {sWS}, {T0} offen sc1")
        hKV = a(f"buffer_store_dwordx4 v[44:47], {vL16}, {sWS}, {T0} offen offset:1024 sc1")
        a(f"""
        ds_write_b128 v11, v[40:43]
        ds_write_b128 v12, v[44:47] offset:1024
        v_mov_b32 v120, 0x3f803f80
        v_mov_b32 v121, 0x3f803f80
        v_mov_b32 v122, 0x3f803f80
        v_mov_b32 v123, 0x3f803f80
        v_mov_b32 v1, {T1}
        ds_write_b128 v1, v[120:123] offset:2048
        """)
        self.stamp("kvdone")
        for s in range(16):
            if s + 4 < 16:
                a(f"ds_read_b128 {vr(WQ(s + 4))}, v9 offset:{(s + 4) * 3072}")
            for T in range(2):
                c = "0" if s == 0 else vr(aQ[T])
                a(f"v_mfma_f32_16x16x32_bf16 {vr(aQ[T])}, {vr(WQ(s))}, {vr(XF(T, s))}, {c}")
            if s == 4:
                a(f"""
                v_mov_b32 v3, {vL16}
                v_lshrrev_b32 v1, 5, v0
                v_lshlrev_b32 v1, 8, v1
                v_add_u32 v2, 1024, v1
                v_lshl_add_u32 v4, {vN}, 4, v2
                s_mov_b32 vcc_lo, 0x0ff00000
                s_mov_b32 vcc_hi, 0x0ff00000
                v_cndmask_b32 v4, v4, v2, vcc
                v_add_u32 v5, 512, v4
                v_mov_b32 v1, 2048
                s_mov_b32 vcc_lo, 0xf00f0000
                s_mov_b32 vcc_hi, 0xf00f0000
                v_cndmask_b32 v4, v4, v1, vcc
                v_cndmask_b32 v5, v5, v1, vcc
                v_mov_b32 v2, 0xdddddddd
                """)
            if s == 8:
                a(f"""
                s_lshl_b32 {T0}, {sJ}, 3
                s_add_u32 {T0}, {T0}, {sGX}
                s_lshl_b32 {T0}, {T0}, 7
                s_lshl_b32 {T1}, {sW}, 2
                s_add_u32 {T0}, {T0}, {T1}
                s_add_u32 {T0}, {T0}, {WS_KVFLAG}
                v_mov_b32 v124, {sTAG}
                """)
        a.waith(hKV)
        self.flag_store("v124", vL16, T0, "sc1")
        for T in range(2):
            for i in range(4):
                a(f"v_fma_f32 v{aQ[T] + i}, v{98 + 2 * T}, v{aQ[T] + i}, v{48 + 4 * T + i}")
        for i in range(8):
            a(f"v_mul_f32 v{32 + i}, {f2u(QSCALE)}, v{32 + i}")
        a("""
        v_cvt_pk_bf16_f32 v64, v32, v33
        v_cvt_pk_bf16_f32 v65, v34, v35
        v_cvt_pk_bf16_f32 v66, v36, v37
        v_cvt_pk_bf16_f32 v67, v38, v39
        v_permlane16_swap_b32 v64, v66
        v_permlane16_swap_b32 v65, v67
        """)
        a.wait(lg=0)
        a("s_barrier")
        self.stamp("B0", (0, 1))
        if self.stop == "qkv":
            a(f"""
            s_lshl_b32 {T0}, {sW}, 5
            s_add_u32 {T0}, {T0}, {sJ}
            s_lshl_b32 {T0}, {T0}, 10
            s_add_u32 {T0}, {T0}, {sGRP}
            buffer_store_dwordx4 v[64:67], {vL16}, {sWS}, {T0} offen
            """)
            return self.finish()
        self.attention()
        if self.stop == "attn":
            return self.finish()
        self.post()
        return self.finish()

    def scale_block(self, nparts, Wp, Wu, sG, vout, lds_out):
        a = self.a
        base = self.sb_tmp if hasattr(self, "sb_tmp") else 20
        GS = lambda sp: base + 4 * sp
        ACC = lambda p: base + 8 + 4 * p
        GF = lambda sp: base + 20 + 8 * sp
        g, t0, t1, a1, a2 = self.sb_regs if hasattr(self, "sb_regs") else ("v16", 18, 19, "v1", "v2")
        a(f"""
        v_lshlrev_b32 v{t0}, 16, {g}
        v_and_b32 v{t1}, 0xffff0000, {g}
        v_lshl_add_u32 {a1}, v0, 3, {sG}
        v_lshl_add_u32 {a2}, v0, 2, {sG}
        ds_write_b64 {a1}, v[{t0}:{t1}]
        ds_write_b32 {a2}, {g} offset:512
        v_lshl_add_u32 {a1}, v7, 5, {sG}
        v_and_b32 {a2}, 1, v0
        v_lshlrev_b32 {a2}, 7, {a2}
        v_lshl_add_u32 {a2}, v7, 4, {a2}
        v_add_u32 {a2}, {sG}, {a2}
        """)
        for sp in range(2):
            a(f"ds_read_b128 {vr(GF(sp))}, {a1} offset:{sp * 128}")
            a(f"ds_read_b128 {vr(GF(sp) + 4)}, {a1} offset:{sp * 128 + 16}")
        for sp in range(2):
            a(f"ds_read_b128 {vr(GS(sp))}, {a2} offset:{512 + sp * 64}")
        for sp in range(2):
            for p in range(nparts):
                u = Wu(sp, p)
                for i in range(4):
                    a(f"v_pk_mul_f32 {vr(u + 2 * i, 2)}, {vr(u + 2 * i, 2)}, {vr(GF(sp) + 2 * i, 2)}")
                for i in range(4):
                    a(f"v_cvt_pk_bf16_f32 v{u + i}, v{u + 2 * i}, v{u + 2 * i + 1}")
                if lds_out:
                    a(f"ds_write_b128 {vout}, {vr(u)} offset:{(sp * nparts + p) * 1024}")
        for sp in range(2):
            for p in range(nparts):
                c = "0" if sp == 0 else vr(ACC(p))
                a(f"v_mfma_f32_16x16x32_bf16 {vr(ACC(p))}, {vr(GS(sp))}, {vr(Wp(sp, p))}, {c}")
        a(f"""
        s_lshl_b32 {T1}, {sW}, 3
        s_add_u32 {T1}, {T1}, {L_UBP}
        v_lshl_add_u32 {a1}, v8, 6, {T1}
        """)
        for p in range(nparts):
            a(f"ds_write_b64 {a1}, {vr(ACC(p), 2)} offset:{p * 1024}")

    def attention(self):
        a = self.a
        vL16 = "v6"
        S = (16, 32)
        O, Q, K, V2 = 48, 64, 68, 72
        V1 = (76, 80)
        base = {"v3": 0, "v4": 0, "v5": 0}

        def rd(dst, addr, t):
            off = t * KVS - base[addr]
            if off > 65535:
                a(f"v_add_u32 {addr}, {off}, {addr}")
                base[addr] += off
                off = 0
            return a(f"ds_read_b128 {vr(dst)}, {addr} offset:{off}")

        def kv_dma(chunk, col):
            a(f"""
            s_add_u32 {T0}, {sGX}, {chunk}
            s_and_b32 {T0}, {T0}, 7
            s_lshl_b32 {T0}, {T0}, 3
            s_add_u32 {T0}, {T0}, {col}
            s_lshl_b32 {T0}, {T0}, 11
            s_add_u32 {T0}, {T0}, {sKVB}
            s_mul_i32 {T1}, {col}, {KVS}
            s_add_u32 m0, {T1}, {chunk * 8 * KVS}
            """)
            self.dma(vL16, sWS, T0, sc="sc1")
            return self.dma(vL16, sWS, T0, off=1024, sc="sc1")

        H = {}
        side = {}

        def at(t, fn):
            side.setdefault(t, []).append(fn)

        def s0_poll():
            a(f"s_cmp_ge_u32 {sW}, 4")
            a("s_cbranch_scc1 L_s0skip")
            s0 = a.snap()
            a(f"""
            v_and_b32 v1, 7, v0
            v_lshlrev_b32 v1, 7, v1
            v_bfe_u32 v84, v0, 3, 1
            v_lshl_add_u32 v1, v84, 4, v1
            s_lshl_b32 {T0}, {sJ}, 10
            s_lshl_b32 {T1}, {sW}, 2
            s_add_u32 {T0}, {T0}, {T1}
            s_add_u32 {T0}, {T0}, {WS_KVFLAG}
            """)
            self.poll(f"buffer_load_dword v84, v1, {sWS}, {T0} offen sc1", ["v84"])
            self.stamp("kvflag", 1)
            a(f"s_add_u32 {T2}, {sW}, 4")
            for ch in (1, 2):
                kv_dma(ch, sW)
                H[ch] = kv_dma(ch, T2)
            a("s_setprio 0")
            a.merge(s0)
            a.L("L_s0skip")

        at(3, s0_poll)
        for c in range(1, 8):
            def bar(c=c):
                a.waith(H[c], *H.get(("extra", c), []))
                a.wait(lg=0)
                self.stamp(f"pre{c}", 2)
                a("s_barrier")
                self.stamp(f"bar{c}", (1, 2))
                a("s_setprio 3")
                if c + 2 < 8:
                    H[c + 2] = kv_dma(c + 2, sW)
            at(8 * c - 2, bar)
            at(8 * c + 2, lambda: a("s_setprio 2"))
            at(8 * c + 4, lambda: a("s_setprio 1"))
            at(8 * c + 5, lambda: a("s_setprio 0"))
        self.side_work(at, H)

        a(f"""
        v_and_b32 v1, 7, v0
        v_mul_u32_u24 v1, {8 * KVS}, v1
        s_mul_i32 {T1}, {sW}, {KVS}
        v_add_u32 v1, {T1}, v1
        """)
        rd(K, "v3", 0)
        rd(V1[0], "v4", 0)
        rd(V1[1], "v4", 1)
        a("ds_write_b128 v1, v[120:123] offset:2048")
        a(f"s_cmp_ge_u32 {sW}, 4")
        a(f"s_cbranch_scc1 L_prio0")
        a("s_setprio 1")
        a.L("L_prio0")
        for i in range(16):
            a(f"v_mov_b32 v{O + i}, 0")
        a(f"v_mfma_f32_32x32x16_bf16 {vr(S[0], 16)}, {vr(K)}, {vr(Q)}, 0")
        rd(K, "v3", 1)
        for t in range(64):
            Sa, Sb = S[t & 1], S[(t + 1) & 1]
            a.C(f"tile {t}")
            for fn in side.get(t, []):
                fn()
            e = lambda i: a(f"v_exp_f32 v{Sa + i}, v{Sa + i}")
            e(0)
            if t > 0 and len(a.lg) > 1:
                a.wait(lg=1)
            e(1)
            if t > 0:
                a(f"v_smfmac_f32_32x32x32_bf16 {vr(O, 16)}, {vr(V2)}, {vr(Sb + 8, 8)}, v2")
            rd(V2, "v5", t)
            for i in (2, 3, 4):
                e(i)
            if t + 1 < 64:
                a(f"v_mfma_f32_32x32x16_bf16 {vr(Sb, 16)}, {vr(K)}, {vr(Q)}, 0")
                if t + 2 < 64:
                    rd(K, "v3", t + 2)
            for i in (5, 6, 7, 8, 9):
                e(i)
            a(f"v_smfmac_f32_32x32x32_bf16 {vr(O, 16)}, {vr(V1[t & 1])}, {vr(Sa, 8)}, v2")
            if t + 2 < 64:
                rd(V1[t & 1], "v4", t + 2)
            for i in range(10, 16):
                e(i)
        a(f"v_smfmac_f32_32x32x32_bf16 {vr(O, 16)}, {vr(V2)}, {vr(S[1] + 8, 8)}, v2")
        a("s_setprio 0")
        a(f"""
        s_mov_b32 s82, 0
        s_mov_b32 s83, -1
        s_mov_b32 {T0}, {f2u(2.0 ** -40)}
        s_mov_b32 {T1}, {f2u(2.0 ** 40)}
        v_cndmask_b32 v16, v{O + 8}, v{O + 12}, s[82:83]
        v_cmp_nle_f32 vcc, {T0}, v16
        v_cmp_nge_f32 s[82:83], {T1}, v16
        s_or_b64 vcc, vcc, s[82:83]
        """)
        if self.force_slow:
            a("s_branch L_slow")
        else:
            a("s_cbranch_vccnz L_slow")
        self.slow_state = a.snap()
        self.slow_base = dict(base)
        a.L("L_attn_done")
        self.stamp("attn", (0, 1))
        a(f"""
        v_rcp_f32 v16, v16
        s_lshl_b32 {T0}, {sW}, 5
        s_add_u32 {T0}, {T0}, {sJ}
        s_lshl_b32 {T0}, {T0}, 10
        s_add_u32 {T0}, {T0}, {sGRP}
        """)
        for i in range(8):
            a(f"v_mul_f32 v{O + i}, v16, v{O + i}")
        for i in range(4):
            a(f"v_cvt_pk_bf16_f32 v{20 + i}, v{O + 2 * i}, v{O + 2 * i + 1}")
        a(f"""
        s_lshr_b32 {T1}, {sW}, 1
        s_lshl_b32 {T1}, {T1}, 8
        s_lshl_b32 {T2}, {sJ}, 3
        s_add_u32 {T1}, {T1}, {T2}
        s_and_b32 {T2}, {sW}, 1
        s_lshl_b32 {T2}, {T2}, 2
        s_add_u32 {T1}, {T1}, {T2}
        s_add_u32 {T1}, {T1}, {sGRP}
        s_add_u32 {T1}, {T1}, {G_OFLAG}
        v_mov_b32 v17, {sTAG}
        """)

        def st(sc):
            a(f"buffer_store_dwordx4 v[20:23], {vL16}, {sWS}, {T0} offen {sc}")
            a.wait(vm=0)
            self.flag_store("v17", vL16, T1, sc)
        self.pub(st)

    def slow_path(self):
        a = self.a
        a.restore(self.slow_state)
        O, Q, K, V2, V1 = 48, 64, 68, 72, 76
        a.L("L_slow")
        a.wait(vm=0, lg=0)
        for r in ("v3", "v4", "v5"):
            a(f"v_subrev_u32 {r}, {self.slow_base[r]}, {r}")
        a(f"""
        v_mov_b32 v32, 0xff800000
        v_mov_b32 v1, v3
        s_mov_b32 {T0}, 64
        L_slow1:
        ds_read_b128 {vr(K)}, v1
        v_add_u32 v1, {KVS}, v1
        v_mfma_f32_32x32x16_bf16 v[16:31], {vr(K)}, {vr(Q)}, 0
        """)
        for i in range(8):
            a(f"v_max3_f32 v32, v32, v{16 + 2 * i}, v{17 + 2 * i}")
        a(f"""
        s_sub_u32 {T0}, {T0}, 1
        s_cmp_lg_u32 {T0}, 0
        s_cbranch_scc1 L_slow1
        v_mov_b32 v33, v32
        v_permlane32_swap_b32 v32, v33
        v_max_f32 v32, v32, v33
        v_sub_f32 v32, 0, v32
        """)
        for i in range(1, 16):
            a(f"v_mov_b32 v{32 + i}, v32")
        for i in range(16):
            a(f"v_mov_b32 v{O + i}, 0")
        a(f"""
        s_mov_b32 {T0}, 64
        L_slow2:
        ds_read_b128 {vr(K)}, v3
        ds_read_b128 {vr(V1)}, v4
        ds_read_b128 {vr(V2)}, v5
        v_add_u32 v3, {KVS}, v3
        v_add_u32 v4, {KVS}, v4
        v_add_u32 v5, {KVS}, v5
        s_waitcnt lgkmcnt(0)
        v_mfma_f32_32x32x16_bf16 v[16:31], {vr(K)}, {vr(Q)}, v[32:47]
        """)
        for i in range(16):
            a(f"v_exp_f32 v{16 + i}, v{16 + i}")
        a(f"""
        v_smfmac_f32_32x32x32_bf16 {vr(O, 16)}, {vr(V1)}, v[16:23], v2
        v_smfmac_f32_32x32x32_bf16 {vr(O, 16)}, {vr(V2)}, v[24:31], v2
        s_sub_u32 {T0}, {T0}, 1
        s_cmp_lg_u32 {T0}, 0
        s_cbranch_scc1 L_slow2
        s_mov_b32 s82, 0
        s_mov_b32 s83, -1
        v_cndmask_b32 v16, v{O + 8}, v{O + 12}, s[82:83]
        s_branch L_attn_done
        """)

    def side_work(self, at, H):
        a = self.a
        vL16 = "v6"
        X = {}

        def pf_issue():
            a(f"""
            s_sub_u32 {sTASK}, 255, s2
            s_lshl_b32 {T3}, {sW}, 11
            s_add_u32 {T3}, {T3}, {L_PF}
            s_mov_b32 s55, 0x20000
            v_lshrrev_b32 v84, 1, v0
            v_and_b32 v85, 1, v0
            v_lshlrev_b32 v85, 4, v85
            s_cmp_ge_u32 {sTASK}, 86
            s_cbranch_scc1 L_pf_n1
            s_mov_b32 s52, s12
            s_mov_b32 s53, s13
            s_mov_b32 s54, {512 * 2752}
            v_mul_u32_u24 v84, 2752, v84
            v_add_u32 v84, v84, v85
            s_mul_i32 {T0}, {sW}, {64 * 2752}
            s_lshl_b32 {T1}, {sTASK}, 5
            s_add_u32 {T0}, {T0}, {T1}
            s_add_u32 {T1}, {T0}, {32 * 2752}
            s_lshl_b32 {sPFD}, {sTASK}, 14
            s_add_u32 {sPFD}, {sPFD}, {WS_W1F - L_PF}
            s_add_u32 {sPFD}, {sPFD}, {T3}
            v_lshlrev_b32 v86, 8, v7
            v_lshl_add_u32 v86, v8, 3, v86
            v_add_u32 v87, 128, v86
            v_add_u32 v88, 1024, v86
            v_add_u32 v89, 1024, v87
            s_branch L_pf_go
            L_pf_n1:
            s_cmp_ge_u32 {sTASK}, 172
            s_cbranch_scc1 L_pf_n2
            s_mov_b32 s52, s14
            s_mov_b32 s53, s15
            s_mov_b32 s54, {1376 * 1024}
            v_lshrrev_b32 v84, 3, v0
            v_and_b32 v85, 7, v0
            v_lshlrev_b32 v85, 4, v85
            v_lshl_add_u32 v84, v84, 10, v85
            s_sub_u32 {T2}, {sTASK}, 86
            s_lshl_b32 {T0}, {T2}, 14
            s_lshl_b32 {T1}, {sW}, 7
            s_add_u32 {T0}, {T0}, {T1}
            s_add_u32 {T1}, {T0}, 8192
            s_mul_i32 {sPFD}, {sW}, {86 * 2048}
            s_lshl_b32 {T2}, {T2}, 11
            s_add_u32 {sPFD}, {sPFD}, {T2}
            s_add_u32 {sPFD}, {sPFD}, {WS_W2F}
            v_lshrrev_b32 v86, 5, v0
            v_bfe_u32 v87, v0, 2, 2
            v_lshl_add_u32 v86, v86, 3, v87
            v_lshlrev_b32 v86, 7, v86
            v_and_b32 v87, 1, v7
            v_lshl_add_u32 v86, v87, 5, v86
            v_and_b32 v87, 3, v0
            v_lshl_add_u32 v86, v87, 3, v86
            v_add_u32 v87, 512, v86
            v_add_u32 v88, 64, v86
            v_add_u32 v89, 64, v87
            s_branch L_pf_go
            L_pf_n2:
            s_mov_b32 s52, s8
            s_mov_b32 s53, s9
            s_mov_b32 s54, {512 * 1024}
            v_lshl_add_u32 v84, v84, 10, v85
            s_sub_u32 {T2}, {sTASK}, 172
            s_lshl_b32 {T0}, {sW}, 16
            s_lshl_b32 {T1}, {T2}, 5
            s_add_u32 {T0}, {T0}, {T1}
            s_add_u32 {T1}, {T0}, {32 * 1024}
            s_lshl_b32 {sPFD}, {T2}, 14
            s_add_u32 {sPFD}, {sPFD}, {(WS_WOF - L_PF) & 0xffffffff}
            s_add_u32 {sPFD}, {sPFD}, {T3}
            v_lshrrev_b32 v86, 5, v0
            v_lshlrev_b32 v86, 9, v86
            v_and_b32 v87, 31, v0
            v_lshl_add_u32 v86, v87, 3, v86
            v_add_u32 v87, 256, v86
            v_add_u32 v88, 1024, v86
            v_add_u32 v89, 1024, v87
            L_pf_go:
            s_mov_b32 m0, {T3}
            v_add_u32 v86, {T3}, v86
            """)
            self.dma("v84", sPF, T0)
            a(f"s_add_u32 m0, {T3}, 1024")
            a(f"v_add_u32 v87, {T3}, v87")
            X["pf"] = self.dma("v84", sPF, T1)
            a(f"v_add_u32 v88, {T3}, v88")
            a(f"v_add_u32 v89, {T3}, v89")

        def pf_do():
            a.waith(X["pf"])
            a("""
            ds_read_b64_tr_b16 v[128:129], v86
            ds_read_b64_tr_b16 v[130:131], v87
            ds_read_b64_tr_b16 v[132:133], v88
            ds_read_b64_tr_b16 v[134:135], v89
            """)
            a(f"s_cmp_ge_u32 {sTASK}, 86")
            a("s_cbranch_scc1 L_pf_plain")
            s0 = a.snap()
            a(f"""
            s_lshl_b32 {T0}, {sW}, 8
            s_add_u32 {T0}, {T0}, {WS_MODG + 768 * 8}
            s_lshl_b32 {T2}, {sW}, 10
            s_add_u32 {T2}, {T2}, {L_G}
            """)
            self.poll(f"buffer_load_dwordx2 v[84:85], v13, {sWS}, {T0} offen sc1", ["v85"])
            for i in range(8):
                a(f"v_lshlrev_b32 v{136 + 2 * i}, 16, v{128 + i}")
                a(f"v_and_b32 v{137 + 2 * i}, 0xffff0000, v{128 + i}")
            self.sb_tmp = 152
            self.sb_regs = ("v84", 86, 87, "v88", "v89")
            self.scale_block(1, lambda sp, p: 128 + 4 * sp, lambda sp, p: 136 + 8 * sp, T2, None, lds_out=False)
            for i in range(4):
                a(f"v_mov_b32 v{128 + i}, v{136 + i}")
                a(f"v_mov_b32 v{132 + i}, v{144 + i}")
            a.merge(s0)
            a.L("L_pf_plain")
            a.wait(lg=0)
            a(f"s_cmp_ge_u32 {sTASK}, 204")
            a("s_cbranch_scc1 L_pf_none")
            s0 = a.snap()
            a(f"buffer_store_dwordx4 v[128:131], {vL16}, {sWS}, {sPFD} offen sc1")
            h = a(f"buffer_store_dwordx4 v[132:135], {vL16}, {sWS}, {sPFD} offen offset:1024 sc1")
            H[("extra", 3)] = [h]
            a.merge(s0)
            a.L("L_pf_none")
            self.stamp("pfdo", 1)

        def pf_flag():
            a(f"s_cmp_lg_u32 {sW}, 0")
            a("s_cbranch_scc1 L_pf_noflag")
            s0 = a.snap()
            a(f"s_cmp_ge_u32 {sTASK}, 86")
            a("s_cbranch_scc1 L_pf_noub")
            s1 = a.snap()
            a(f"v_lshlrev_b32 v84, 6, v8")
            a(f"v_add_u32 v84, {L_UBP}, v84")
            for i in range(4):
                a(f"ds_read_b128 {vr(128 + 4 * i)}, v84 offset:{16 * i}")
            a(f"""
            v_pk_add_f32 v[128:129], v[128:129], v[130:131]
            v_pk_add_f32 v[132:133], v[132:133], v[134:135]
            v_pk_add_f32 v[136:137], v[136:137], v[138:139]
            v_pk_add_f32 v[140:141], v[140:141], v[142:143]
            v_pk_add_f32 v[128:129], v[128:129], v[132:133]
            v_pk_add_f32 v[136:137], v[136:137], v[140:141]
            v_pk_add_f32 v[128:129], v[128:129], v[136:137]
            v_lshlrev_b32 v84, 2, v8
            s_lshl_b32 {T0}, {sTASK}, 7
            s_add_u32 {T0}, {T0}, {WS_UB2}
            buffer_store_dword v128, v84, {sWS}, {T0} offen sc1
            buffer_store_dword v129, v84, {sWS}, {T0} offen offset:64 sc1
            """)
            a.wait(vm=0)
            a.merge(s1)
            a.L("L_pf_noub")
            a(f"""
            s_getreg_b32 {T1}, hwreg(HW_REG_XCC_ID, 0, 4)
            s_xor_b32 {T1}, {T1}, {sTAG}
            v_mov_b32 v84, {T1}
            s_lshl_b32 {T0}, {sGX}, 5
            s_add_u32 {T0}, {T0}, {sJ}
            s_lshl_b32 {T0}, {T0}, 2
            s_add_u32 {T0}, {T0}, {WS_PFLAG}
            """)
            self.flag_store("v84", vL16, T0, "sc1")
            a.merge(s0)
            a.L("L_pf_noflag")

        def pf_poll():
            lab, done = a.newlabel("L_poll"), a.newlabel("L_polld")
            a(f"s_mov_b32 {sSPIN}, 0x40000")
            a(f"s_mov_b32 {T0}, {WS_PFLAG}")
            a.L(lab)
            a(f"buffer_load_dwordx4 v[84:87], {vL16}, {sWS}, {T0} offen sc1")
            a(f"s_sub_u32 {sSPIN}, {sSPIN}, 1")
            a(f"s_cbranch_scc1 {done}")
            a.wait(vm=0)
            for i in range(4):
                a(f"v_xor_b32 v{84 + i}, {sTAG}, v{84 + i}")
            a("""
            v_or3_b32 v88, v84, v85, v86
            v_or_b32 v88, v88, v87
            v_cmp_lt_u32 vcc, 15, v88
            """)
            a(f"s_cbranch_vccnz {lab}")
            a.L(done)
            a.wait(vm=0)
            a(f"""
            s_getreg_b32 {T1}, hwreg(HW_REG_XCC_ID, 0, 4)
            v_and_b32 v89, v84, v85
            v_and_b32 v90, v86, v87
            v_and_b32 v89, v89, v90
            v_cmp_ne_u32 vcc, {T1}, v88
            v_cmp_ne_u32 s[82:83], {T1}, v89
            s_or_b64 vcc, vcc, s[82:83]
            s_lshl_b32 {T0}, {sGX}, 3
            s_lshr_b64 s[82:83], vcc, {T0}
            s_and_b32 {T0}, s82, 0xff
            s_cselect_b32 {sLOC}, 0, 1
            """)
            self.stamp("pfpoll", 1)
            if self.force_safe:
                a(f"s_mov_b32 {sLOC}, 0")
            a(f"""
            s_mul_i32 {T0}, {sCG}, 11
            s_cmp_eq_u32 {sCG}, 7
            s_cselect_b32 {T0}, 76, {T0}
            s_lshl_b32 {T1}, {sW}, 1
            s_add_u32 {sU0}, {T0}, {T1}
            s_add_u32 {sU1}, {sU0}, 1
            s_add_u32 {T1}, {T0}, {sW}
            s_add_u32 {T1}, {T1}, 4
            s_min_u32 {T1}, {T1}, 85
            s_lshl_b32 {T2}, {sCG}, 2
            s_add_u32 {T2}, {T2}, {sW}
            s_sub_u32 {T2}, {T2}, 4
            s_lshl_b32 {T2}, {T2}, 14
            s_add_u32 {T2}, {T2}, {WS_WOF}
            s_lshl_b32 {sB0}, {sU0}, 14
            s_add_u32 {sB0}, {sB0}, {WS_W1F}
            s_cmp_ge_u32 {sW}, 4
            s_cselect_b32 {sB0}, {T2}, {sB0}
            s_cselect_b32 {sU1}, {T1}, {sU1}
            s_cselect_b32 {sU0}, {T1}, {sU0}
            s_lshl_b32 {sB1}, {sU1}, 14
            s_add_u32 {sB1}, {sB1}, {WS_W1F}
            """)

        def wload(i):
            def f():
                for sb, rb in ((sB0, 128), (sB1, 192)):
                    for k in range(4):
                        o = f" offset:{k * 1024}" if k else ""
                        a(f"buffer_load_dwordx4 {vr(rb + (4 * i + k) * 4)}, {vL16}, {sWS}, {sb} offen{o} sc1")
                    a(f"s_add_u32 {sb}, {sb}, 4096")
            return f

        def small_loads():
            a(f"""
            v_lshlrev_b32 v84, 4, v7
            s_lshl_b32 {T0}, {sU0}, 7
            s_add_u32 {T0}, {T0}, {WS_UB2}
            s_lshl_b32 {T1}, {sU1}, 7
            s_add_u32 {T1}, {T1}, {WS_UB2}
            buffer_load_dwordx4 v[104:107], v84, {sWS}, {T0} offen sc1
            buffer_load_dwordx4 v[108:111], v84, {sWS}, {T0} offen offset:64 sc1
            buffer_load_dwordx4 v[112:115], v84, {sWS}, {T1} offen sc1
            buffer_load_dwordx4 v[116:119], v84, {sWS}, {T1} offen offset:64 sc1
            s_lshl_b32 {T2}, {sCG}, 2
            s_and_b32 {T0}, {sW}, 3
            s_add_u32 {T2}, {T2}, {T0}
            s_lshl_b32 {T0}, {T2}, 6
            s_add_u32 {T0}, {T0}, {WS_MODG + 512 * 8}
            buffer_load_dwordx4 v[100:103], v84, {sWS}, {T0} offen sc1
            v_and_b32 v85, 7, v0
            v_lshlrev_b32 v85, 5, v85
            s_lshl_b32 {T0}, {sCG}, 8
            s_add_u32 {T0}, {T0}, {WS_MODG + 1280 * 8}
            buffer_load_dwordx4 v[120:123], v85, {sWS}, {T0} offen sc1
            buffer_load_dwordx4 v[124:127], v85, {sWS}, {T0} offen offset:16 sc1
            v_lshlrev_b32 v85, 10, v8
            v_lshl_add_u32 v85, v7, 3, v85
            s_lshl_b32 {T0}, {sGX}, 18
            s_lshl_b32 {T1}, {sTQ}, 16
            s_add_u32 {T0}, {T0}, {T1}
            s_lshl_b32 {T2}, {T2}, 5
            s_add_u32 {T0}, {T0}, {T2}
            """)
            for T in range(4):
                a(f"buffer_load_dwordx2 {vr(92 + 2 * T, 2)}, v85, {sX}, {T0} offen")
                if T < 3:
                    a(f"s_add_u32 {T0}, {T0}, 16384")

        at(7, pf_issue)
        at(15, pf_do)
        at(23, pf_flag)
        at(31, pf_poll)
        at(33, wload(0))
        at(39, wload(1))
        at(47, wload(2))
        at(55, wload(3))
        at(57, small_loads)

    def post(self):
        a = self.a
        vL16 = "v6"
        a("s_barrier")
        a(f"""
        v_and_b32 v1, 7, v0
        v_lshlrev_b32 v1, 2, v1
        s_lshl_b32 {T0}, {sTQ}, 8
        s_lshl_b32 {T1}, {sW}, 5
        s_add_u32 {T0}, {T0}, {T1}
        s_add_u32 {T0}, {T0}, {sGRP}
        s_add_u32 {T0}, {T0}, {G_OFLAG}
        s_lshl_b32 {T2}, {sTQ}, 16
        s_lshl_b32 {T3}, {sW}, 12
        s_add_u32 {T2}, {T2}, {T3}
        s_add_u32 {T2}, {T2}, {sGRP}
        """)
        self.poll(f"buffer_load_dword v16, v1, {sWS}, {T0} offen sc1", ["v16"])
        self.stamp("oflag")

        def tile_dma(ldsb, goff):
            for tt in range(2):
                a(f"s_add_u32 m0, {T3}, {ldsb + tt * 32768}")
                a(f"s_add_u32 {T0}, {T2}, {goff + tt * 32768}")
                for k in range(4):
                    h = self.dma(vL16, sWS, T0, off=k * 1024, sc="sc1")
            return h

        h = tile_dma(L_O, G_O)
        a(f"""
        v_lshlrev_b32 v9, 9, v7
        v_lshl_add_u32 v9, v8, 4, v9
        v_add_u32 v10, {L_X1}, v9
        """)
        a.waith(h)
        a("s_barrier")
        self.stamp("oland")
        a(f"s_cmp_lt_u32 {sW}, 4")
        a("s_cbranch_scc1 L_noC")
        s0 = a.snap()
        BUF = lambda s, T: 16 + ((s % 3) * 4 + T) * 4
        ACC = lambda T: 64 + 4 * T

        def aread(addr, s):
            for T in range(4):
                a(f"ds_read_b128 {vr(BUF(s, T))}, {addr} offset:{(T >> 1) * 32768 + s * 2048 + (T & 1) * 256}")

        aread("v9", 0)
        aread("v9", 1)
        for s in range(16):
            if s + 2 < 16:
                aread("v9", s + 2)
            for T in range(4):
                c = "0" if s == 0 else vr(ACC(T))
                a(f"v_mfma_f32_16x16x32_bf16 {vr(ACC(T))}, {vr(128 + 4 * s)}, {vr(BUF(s, T))}, {c}")
            if s == 4:
                a("""
                v_and_b32 v101, 0xffff0000, v100
                v_lshlrev_b32 v100, 16, v100
                v_and_b32 v103, 0xffff0000, v102
                v_lshlrev_b32 v102, 16, v102
                """)
            if s in (6, 8):
                for i in range(4):
                    k = (s - 6) * 2 + i
                    a(f"v_lshlrev_b32 v{128 + 2 * k}, 16, v{92 + k}")
                    a(f"v_and_b32 v{129 + 2 * k}, 0xffff0000, v{92 + k}")
            if s == 10:
                a(f"""
                s_lshl_b32 {T4}, {sCG}, 2
                s_add_u32 {T4}, {T4}, {sW}
                s_sub_u32 {T4}, {T4}, 4
                s_lshl_b32 {T0}, {T4}, 10
                s_lshl_b32 {T1}, {sTQ}, 16
                s_add_u32 {T0}, {T0}, {T1}
                s_add_u32 {T0}, {T0}, {sGRP}
                s_add_u32 {T0}, {T0}, {G_X1}
                s_add_u32 {T5}, {T0}, 32768
                s_lshl_b32 {T4}, {T4}, 2
                s_lshl_b32 {T1}, {sTQ}, 8
                s_add_u32 {T1}, {T1}, {T4}
                s_add_u32 {T1}, {T1}, {sGRP}
                s_add_u32 {T1}, {T1}, {G_X1FLAG}
                v_mov_b32 v1, {sTAG}
                """)
        for T in range(4):
            for i in range(2):
                a(f"v_pk_fma_f32 {vr(ACC(T) + 2 * i, 2)}, {vr(ACC(T) + 2 * i, 2)}, {vr(100 + 2 * i, 2)}, {vr(128 + 4 * T + 2 * i, 2)}")
        for T in range(4):
            for i in range(2):
                a(f"v_cvt_pk_bf16_f32 v{16 + 2 * T + i}, v{ACC(T) + 2 * i}, v{ACC(T) + 2 * i + 1}")
        a("""
        v_permlane16_swap_b32 v16, v18
        v_permlane16_swap_b32 v17, v19
        v_permlane16_swap_b32 v20, v22
        v_permlane16_swap_b32 v21, v23
        """)

        def st(sc):
            a(f"buffer_store_dwordx4 v[16:19], {vL16}, {sWS}, {T0} offen {sc}")
            a(f"buffer_store_dwordx4 v[20:23], {vL16}, {sWS}, {T5} offen {sc}")
            a.wait(vm=0)
            self.flag_store("v1", vL16, T1, sc)
        self.pub(st)
        a.merge(s0)
        a.L("L_noC")
        self.stamp("cdone")
        a(f"""
        v_and_b32 v1, 3, v0
        v_lshlrev_b32 v1, 2, v1
        s_lshl_b32 {T0}, {sTQ}, 8
        s_lshl_b32 {T1}, {sW}, 4
        s_add_u32 {T0}, {T0}, {T1}
        s_add_u32 {T0}, {T0}, {sGRP}
        s_add_u32 {T0}, {T0}, {G_X1FLAG}
        """)
        self.poll(f"buffer_load_dword v24, v1, {sWS}, {T0} offen sc1", ["v24"])
        h = tile_dma(L_X1, G_X1)
        a(f"""
        s_lshr_b32 {T0}, {sW}, 2
        s_lshl_b32 {T0}, {T0}, 15
        s_and_b32 {T1}, {sW}, 3
        s_lshl_b32 {T1}, {T1}, 7
        s_add_u32 {T0}, {T0}, {T1}
        s_add_u32 {T0}, {T0}, {L_X1}
        v_and_b32 v1, 7, v0
        v_lshrrev_b32 v2, 3, v0
        v_lshlrev_b32 v11, 4, v1
        v_lshl_add_u32 v11, v2, 9, v11
        v_add_u32 v11, {T0}, v11              ; stats
        v_lshlrev_b32 v3, 4, v2
        v_lshl_add_u32 v3, v1, 9, v3
        s_lshl_b32 {T1}, {sCG}, 12
        s_add_u32 {T0}, {T0}, {T1}
        v_add_u32 v3, {T0}, v3
        s_mul_i32 {T0}, {sW}, 11
        s_cmp_eq_u32 {sW}, 7
        s_cselect_b32 {T4}, 76, {T0}
        s_mul_i32 {sW2B}, {sCG}, {86 * 2048}
        s_lshl_b32 {T0}, {T4}, 11
        s_add_u32 {sW2B}, {sW2B}, {T0}
        s_add_u32 {sW2B}, {sW2B}, {WS_W2F}
        """)
        a.waith(h)
        a("s_barrier")
        self.stamp("x1land")
        for i in range(8):
            a(f"ds_read_b128 {vr(16 + 4 * i)}, v11 offset:{i * 4096}")
        a("ds_read_b128 v[12:15], v3")
        a("""
        v_mov_b32 v1, 0x3f803f80
        v_mov_b32 v96, 0
        v_mov_b32 v97, 0
        v_mov_b32 v98, 0
        v_mov_b32 v99, 0
        """)
        for i in range(32):
            a(f"v_dot2_f32_bf16 v{96 + 2 * (i & 1)}, v{16 + i}, v1, v{96 + 2 * (i & 1)}")
            a(f"v_dot2_f32_bf16 v{97 + 2 * (i & 1)}, v{16 + i}, v{16 + i}, v{97 + 2 * (i & 1)}")
        BUF = lambda s, T: 16 + ((s % 3) * 4 + T) * 4
        aread("v10", 0)
        aread("v10", 1)
        a(f"""
        v_pk_add_f32 v[96:97], v[96:97], v[98:99]
        s_lshl_b32 {T0}, {sW}, 6
        s_add_u32 {T0}, {T0}, {L_ST2}
        v_add_f32_dpp v96, v96, v96 row_ror:8 row_mask:0xf bank_mask:0xf
        v_add_f32_dpp v97, v97, v97 row_ror:8 row_mask:0xf bank_mask:0xf
        v_mov_b32 v98, v96
        v_mov_b32 v99, v97
        v_permlane16_swap_b32 v96, v98
        v_permlane16_swap_b32 v97, v99
        v_pk_add_f32 v[96:97], v[96:97], v[98:99]
        v_mov_b32 v98, v96
        v_mov_b32 v99, v97
        v_permlane32_swap_b32 v96, v98
        v_permlane32_swap_b32 v97, v99
        v_pk_add_f32 v[96:97], v[96:97], v[98:99]
        v_mul_f32 v96, {f2u(1.0 / 512)}, v96
        v_mul_f32 v98, v96, v96
        v_mul_f32 v97, {f2u(1.0 / 512)}, v97
        v_sub_f32 v98, v97, v98
        """)
        a(f"""
        v_max_f32 v98, 0, v98
        v_add_f32 v98, {f2u(1e-5)}, v98
        v_rsq_f32 v98, v98
        v_and_b32 v1, 7, v0
        v_lshl_add_u32 v1, v1, 3, {T0}
        v_mul_f32 v99, v96, v98
        v_sub_f32 v99, 0, v99
        ds_write_b64 v1, v[98:99]
        """)
        ACC2 = lambda i, T: 64 + 16 * i + 4 * T

        def w2load(ks, f):
            rb = 128 + 64 * f + 4 * ks
            o = (ks & 1) * 2048 + f * 1024
            a(f"buffer_load_dwordx4 {vr(rb)}, {vL16}, {sWS}, {sW2B} offen offset:{o} sc1")

        def dloop(sets):
            for s in range(16):
                if s + 2 < 16:
                    aread("v10", s + 2)
                for i in sets:
                    for T in range(4):
                        c = "0" if s == 0 else vr(ACC2(i, T))
                        a(f"v_mfma_f32_16x16x32_bf16 {vr(ACC2(i, T))}, {vr(128 + 64 * i + 4 * s)}, {vr(BUF(s, T))}, {c}")
                if s < 11:
                    w2load(s, 0)
                    w2load(s, 1)
                    if s & 1:
                        a(f"s_add_u32 {sW2B}, {sW2B}, 4096")

        def depi(i, ub):
            for T in range(4):
                for k in range(2):
                    t = vr(48 + 2 * k, 2)
                    a(f"v_pk_fma_f32 {t}, {vr(40 + 2 * T, 2)}, {vr(ub + 2 * k, 2)}, {vr(ub + 4 + 2 * k, 2)} op_sel:[1,0,0] op_sel_hi:[1,1,1]")
                for k in range(2):
                    t = vr(48 + 2 * k, 2)
                    acc = vr(ACC2(i, T) + 2 * k, 2)
                    a(f"v_pk_fma_f32 {acc}, {vr(40 + 2 * T, 2)}, {acc}, {t} op_sel_hi:[0,1,1]")
                for k in range(2):
                    a(f"v_cvt_pk_bf16_f32 v{16 + 8 * i + 2 * T + k}, v{ACC2(i, T) + 2 * k}, v{ACC2(i, T) + 2 * k + 1}")
                for k in range(2):
                    r = 16 + 8 * i + 2 * T + k
                    a(f"v_pk_max_i16 v{r}, v{r}, 0")
            b = 16 + 8 * i
            a(f"""
            v_permlane16_swap_b32 v{b}, v{b + 2}
            v_permlane16_swap_b32 v{b + 1}, v{b + 3}
            v_permlane16_swap_b32 v{b + 4}, v{b + 6}
            v_permlane16_swap_b32 v{b + 5}, v{b + 7}
            """)

        def dtail():
            a.wait(lg=0)
            a("s_barrier")
            a(f"v_lshlrev_b32 v1, 3, v8")
            a(f"v_add_u32 v1, {L_ST2}, v1")
            for T in range(4):
                a(f"ds_read_b64 {vr(40 + 2 * T, 2)}, v1 offset:{T * 128}")
            a(f"""
            s_mul_i32 {T0}, {sTQ}, {2 * 86 * 1024}
            s_add_u32 {T0}, {T0}, {sGRP}
            s_add_u32 {T2}, {T0}, {G_HID}
            s_lshl_b32 {T0}, {sU0}, 10
            s_add_u32 {T0}, {T0}, {T2}
            s_add_u32 {T5}, {T0}, {86 * 1024}
            s_lshl_b32 {T1}, {sTQ}, 3
            s_add_u32 {T1}, {T1}, {sCG}
            s_lshl_b32 {T1}, {T1}, 3
            s_add_u32 {T1}, {T1}, {sW}
            s_lshl_b32 {T1}, {T1}, 2
            s_add_u32 {T1}, {T1}, {sGRP}
            s_add_u32 {T1}, {T1}, {G_HFLAG}
            v_mov_b32 v2, {sTAG}
            """)

        a(f"s_cmp_ge_u32 {sW}, 4")
        a("s_cbranch_scc1 L_dB")
        s0 = a.snap()
        dloop((0, 1))
        dtail()
        depi(0, 104)
        depi(1, 112)

        def stA(sc):
            a(f"buffer_store_dwordx4 v[16:19], {vL16}, {sWS}, {T0} offen {sc}")
            a(f"buffer_store_dwordx4 v[20:23], {vL16}, {sWS}, {T5} offen {sc}")
            a(f"buffer_store_dwordx4 v[24:27], {vL16}, {sWS}, {T0} offen offset:1024 {sc}")
            a(f"buffer_store_dwordx4 v[28:31], {vL16}, {sWS}, {T5} offen offset:1024 {sc}")
            a.wait(vm=0)
            self.flag_store("v2", vL16, T1, sc)
        self.pub(stA)
        a("s_branch L_dDone")
        s1 = a.snap()
        a.restore(s0)
        a.L("L_dB")
        dloop((1,))
        dtail()
        depi(1, 112)
        a(f"""
        s_cmp_lt_u32 {sCG}, 6
        s_cselect_b32 {T3}, 7, 6
        """)

        def stB(sc):
            lab = a.newlabel("L_nost")
            a(f"s_cmp_ge_u32 {sW}, {T3}")
            a(f"s_cbranch_scc1 {lab}")
            a(f"buffer_store_dwordx4 v[24:27], {vL16}, {sWS}, {T0} offen {sc}")
            a(f"buffer_store_dwordx4 v[28:31], {vL16}, {sWS}, {T5} offen {sc}")
            a.L(lab)
            a.wait(vm=0)
            self.flag_store("v2", vL16, T1, sc)
        self.pub(stB)
        a.merge(s1)
        a.L("L_dDone")
        self.stamp("ddone")
        a(f"""
        v_and_b32 v1, 7, v0
        v_lshlrev_b32 v1, 2, v1
        s_lshl_b32 {T0}, {sTQ}, 3
        s_add_u32 {T0}, {T0}, {sW}
        s_lshl_b32 {T0}, {T0}, 5
        s_add_u32 {T0}, {T0}, {sGRP}
        s_add_u32 {T0}, {T0}, {G_HFLAG}
        s_lshl_b32 {T4}, {T4}, 10
        s_add_u32 {T2}, {T2}, {T4}
        """)
        self.poll(f"buffer_load_dword v32, v1, {sWS}, {T0} offen sc1", ["v32"])
        self.stamp("hflag")
        ring = [80 + 4 * i for i in range(10)] + [172 + 4 * i for i in range(5)] + [236 + 4 * i for i in range(5)]
        HB = lambda tt, ks: ring[(tt * 11 + ks) % 20]

        def hload(n):
            tt, ks = divmod(n, 11)
            if ks % 4 == 0:
                a(f"s_add_u32 {T0}, {T2}, {tt * 86 * 1024 + ks * 1024}")
            o = f" offset:{(ks % 4) * 1024}" if ks % 4 else ""
            a(f"buffer_load_dwordx4 {vr(HB(tt, ks))}, {vL16}, {sWS}, {T0} offen{o} sc1")

        for n in range(20):
            hload(n)
        EA = lambda tt, f: 16 + 32 * tt + 16 * f
        a(f"""
        v_and_b32 v1, 31, v0
        v_mul_u32_u24 v1, {RED_ROW}, v1
        v_lshrrev_b32 v2, 5, v0
        v_lshl_add_u32 v1, v2, 4, v1
        s_mul_i32 {T1}, {sW}, {RED_W}
        v_add_u32 v9, {T1}, v1
        v_lshrrev_b32 v2, 3, v0
        v_and_b32 v3, 7, v0
        v_mul_u32_u24 v1, {RED_ROW}, v2
        v_lshl_add_u32 v1, v3, 5, v1
        s_mul_i32 {T1}, {sW}, {8 * RED_ROW}
        v_add_u32 v10, {T1}, v1
        v_add_u32 v11, {4 * RED_W}, v10
        v_lshlrev_b32 v2, 10, v2
        v_lshl_add_u32 v4, v3, 4, v2
        """)

        def pwrite(tt, n):
            f, q = divmod(n, 4)
            a(f"ds_write_b128 v9, {vr(EA(tt, f) + 4 * q)} offset:{tt * 32 * RED_ROW + f * 128 + q * 32}")

        for tt in range(2):
            for ks in range(11):
                if ks == 10:
                    lab = a.newlabel("L_k10")
                    a(f"s_cmp_ge_u32 {sW}, 6")
                    a(f"s_cbranch_scc1 {lab}")
                    sk = a.snap()
                for f in range(2):
                    c = "0" if ks == 0 else vr(EA(tt, f), 16)
                    a(f"v_mfma_f32_32x32x16_bf16 {vr(EA(tt, f), 16)}, {vr(128 + 64 * f + 4 * ks)}, {vr(HB(tt, ks))}, {c}")
                if ks == 10:
                    a.merge(sk)
                    a.L(lab)
                if tt == 0 and ks < 2:
                    hload(20 + ks)
                if tt == 1 and 2 <= ks < 10:
                    pwrite(0, ks - 2)
        for n in range(8):
            pwrite(1, n)
        for i in range(4):
            a(f"v_and_b32 v{121 + 2 * i}, 0xffff0000, v{120 + 2 * i}")
            a(f"v_lshlrev_b32 v{120 + 2 * i}, 16, v{120 + 2 * i}")
            a(f"v_lshlrev_b32 v{128 + 2 * i}, 16, v{12 + i}")
            a(f"v_and_b32 v{129 + 2 * i}, 0xffff0000, v{12 + i}")
        a(f"""
        s_lshl_b32 {T0}, {sGX}, 18
        s_lshl_b32 {T1}, {sTQ}, 16
        s_add_u32 {T0}, {T0}, {T1}
        s_lshl_b32 {T1}, {sW}, 13
        s_add_u32 {T0}, {T0}, {T1}
        s_lshl_b32 {T1}, {sCG}, 7
        s_add_u32 {T0}, {T0}, {T1}
        """)
        a.wait(lg=0)
        a("s_barrier")
        self.stamp("edone")
        for src in range(8):
            ad = "v10" if src < 4 else "v11"
            a(f"ds_read_b128 {vr(16 + 8 * src)}, {ad} offset:{(src & 3) * RED_W}")
            a(f"ds_read_b128 {vr(20 + 8 * src)}, {ad} offset:{(src & 3) * RED_W + 16}")
        for src in range(1, 8):
            for k in range(4):
                a(f"v_pk_add_f32 {vr(16 + 2 * k, 2)}, {vr(16 + 2 * k, 2)}, {vr(16 + 8 * src + 2 * k, 2)}")
        for k in range(4):
            a(f"v_pk_fma_f32 {vr(16 + 2 * k, 2)}, {vr(16 + 2 * k, 2)}, {vr(120 + 2 * k, 2)}, {vr(128 + 2 * k, 2)}")
        for k in range(4):
            a(f"v_cvt_pk_bf16_f32 v{24 + k}, v{16 + 2 * k}, v{17 + 2 * k}")
        a(f"buffer_store_dwordx4 v[24:27], v4, {sOUT}, {T0} offen")

    def finish(self):
        a = self.a
        a(f"s_or_b32 {T0}, s2, {sW}")
        a(f"s_cmp_lg_u32 {T0}, 0")
        a("s_cbranch_scc1 L_fin")
        a(f"v_mov_b32 v1, {sTAG}")
        self.flag_store("v1", "v6", "0", "sc1")
        a.L("L_fin")
        if self.stamps:
            a.wait(vm=0)
            self.stamp("end")
            a(f"""
            s_lshl_b32 {T0}, s2, 3
            s_add_u32 {T0}, {T0}, {sW}
            s_lshl_b32 {T0}, {T0}, 7
            s_add_u32 {T0}, {T0}, {WS_STAMP}
            """)
            for i in range(16):
                a(f"v_mov_b32 v{16 + i}, s{STAMP0 + i}")
            a("v_mov_b32 v32, s100")
            a("s_mov_b64 exec, 1")
            for i in range(4):
                a(f"buffer_store_dwordx4 {vr(16 + 4 * i)}, v6, {sWS}, {T0} offen offset:{16 * i}")
            a(f"buffer_store_dword v32, v6, {sWS}, {T0} offen offset:64")
            if self.opt.get("dbg"):
                a(f"s_cmp_lg_u32 s2, {self.opt['dbg'] - 1}")
                a("s_cbranch_scc1 L_end")
                a(f"s_cmp_lg_u32 {sW}, 0")
                a("s_cbranch_scc1 L_end")
                self.srd(sC, 22, 256)
                a("s_memrealtime s[82:83]")
                for i in range(1, 16):
                    a(f"v_subrev_u32 v{16 + i}, s{STAMP0}, v{16 + i}")
                a.wait(lg=0)
                a("s_sub_u32 s82, s82, s100")
                a("v_mov_b32 v16, s82")
                for i in range(4):
                    a(f"buffer_store_dwordx4 {vr(16 + 4 * i)}, v6, {sC}, 0 offen offset:{16 * i}")
        a.L("L_end")
        a("s_endpgm")
        if hasattr(self, "slow_state"):
            self.slow_path()
        n = a.fix_hazards()
        return n


HEADER = """; Fused adaLN-conditioned block (LN+modulate -> MHA -> gated residual -> LN+modulate -> ReLU FFN -> gated residual)
; Kernarg: 0 A_x | 8 A_wqkv | 16 A_wo | 24 B_x | 32 B_w1 | 40 B_w2 | 48 c | 56 w_mod | 64 out | 72 debug | 80 ws
; @launch grid=(256,1,1) block=(512,1,1) lds=163840
.amdgcn_target "amdgcn-amd-amdhsa--gfx950"
.text
.globl {name}_kernel
.p2align 8
.type {name}_kernel,@function
{name}_kernel:
"""
FOOTER = """
    s_endpgm
L_code_end:
.p2align 8
.fill {pad}, 4, 0xbf810000
.section .rodata,"a"
.p2align 6
.amdhsa_kernel {name}_kernel
  .amdhsa_next_free_vgpr 256
  .amdhsa_next_free_sgpr 102
  .amdhsa_accum_offset 256
  .amdhsa_group_segment_fixed_size 0
  .amdhsa_kernarg_size 88
  .amdhsa_user_sgpr_count 2
  .amdhsa_user_sgpr_kernarg_segment_ptr 1
  .amdhsa_system_sgpr_workgroup_id_x 1
.end_amdhsa_kernel
"""


def generate(**kw):
    g = Gen(**kw)
    n = g.build()
    txt = HEADER.format(name=NAME) + g.a.text() + FOOTER.format(name=NAME, pad=64)
    return txt, g


if __name__ == "__main__":
    import argparse
    ap = argparse.ArgumentParser()
    ap.add_argument("-o", default=f"cdna_kernels/{NAME}.s")
    ap.add_argument("--stamps", action="store_true")
    ap.add_argument("--stop", default=None)
    ap.add_argument("--safe", action="store_true")
    ap.add_argument("--slow", action="store_true")
    ap.add_argument("--opt", default="")
    args = ap.parse_args()
    kw = {}
    for o in filter(None, args.opt.split(",")):
        k, v = o.split("=")
        kw[k] = int(v)
    txt, g = generate(stamps=args.stamps, stop=args.stop, force_safe=args.safe, force_slow=args.slow, **kw)
    open(args.o, "w").write(txt)
    print("wrote", args.o, len(txt), "bytes;", len(g.a.ins), "lines; stamps:", g.stamp_names)
```

```python
import sys, os, math, struct
sys.path.insert(0, os.path.dirname(os.path.abspath(__file__)))
from asmlib import Asm

NAME = "adaLN_cond__softmax_full_mha__dense_activation_relu__prompt"

WS_EPOCH = 0
WS_MODG = 0x1000
WS_STATG = 0x4000
WS_PFLAG = 0xC000
WS_UB2 = 0xD000
WS_KVFLAG = 0x10000
WS_WOF = 0x20000
WS_W1F = 0xA0000
WS_W2F = 0x200000
WS_KV = 0x400000
WS_GRP = 0x800000
G_O, G_X1, G_HID = 0, 0x40000, 0x80000
G_OFLAG, G_X1FLAG, G_HFLAG = 0x130000, 0x130400, 0x130800
WS_STAMP = 0x1800000
WS_SIZE = 0x1900000

KVS = 2064
L_WM = 0x0
L_X = 0x8000
L_W = 0x18000
L_PF = 0x20400
L_SC = 0x24400
L_P = 0x24800
L_G = 0x24C00
L_UBP = 0x26C00
L_ST2 = 0x27C00
L_O = 0x0
L_X1 = 0x10000
RED_ROW = 272
RED_W = 64 * RED_ROW
LDS_SIZE = 163840

sW = "s3"
sX, sWQ, sWM, sC, sWS, sOUT, sPF, sCODE = ("s[28:31]", "s[32:35]", "s[36:39]", "s[40:43]", "s[44:47]",
                                           "s[48:51]", "s[52:55]", "s[56:59]")
sGX, sJ, sTAG, sTQ, sCG, sGRP, sLOC, sSPIN = ("s60", "s61", "s62", "s63", "s64", "s65", "s66", "s67")
sKVB, sB0, sB1, sTASK, sPFD, sU0, sU1, sW2B = ("s68", "s69", "s70", "s71", "s72", "s73", "s74", "s75")
T0, T1, T2, T3, T4, T5 = ("s76", "s77", "s78", "s79", "s80", "s81")
STAMP0 = 84

QSCALE = 0.25 * math.log2(math.e)
LOG2E = math.log2(math.e)


def f2u(x):
    return "0x%08x" % struct.unpack("<I", struct.pack("<f", x))[0]


def vr(b, n=4):
    return f"v[{b}:{b + n - 1}]"


class Gen:
    def __init__(self, stamps=False, stop=None, force_safe=False, force_slow=False, sgrp=0, **opt):
        self.sgrp = sgrp
        self.opt = opt
        self.a = Asm()
        self.stamps = stamps
        self.stop = stop
        self.force_safe = force_safe
        self.force_slow = force_slow
        self.nstamp = 0
        self.stamp_names = []

    def stamp(self, name, grp=0):
        if not self.stamps:
            return
        if name not in ("entry", "end") and grp != self.sgrp and not (isinstance(grp, tuple) and self.sgrp in grp):
            return
        a = self.a
        assert self.nstamp < 16
        a("s_memrealtime s[82:83]" if "ampb" in self.opt else "s_memtime s[82:83]")
        a.wait(lg=0)
        a(f"s_mov_b32 s{STAMP0 + self.nstamp}, s82")
        self.nstamp += 1
        self.stamp_names.append(name)

    def srd(self, dst, lo, size):
        d = int(dst[2:].split(":")[0])
        self.a(f"""
        s_mov_b32 s{d}, s{lo}
        s_mov_b32 s{d + 1}, s{lo + 1}
        s_mov_b32 s{d + 2}, {size}
        s_mov_b32 s{d + 3}, 0x20000""")

    def dma(self, vaddr, srd, soff, off=0, sc=""):
        o = f" offset:{off}" if off else ""
        return self.a(f"buffer_load_dwordx4 {vaddr}, {srd}, {soff} offen{o} {sc} lds")

    def poll(self, load, cmps):
        a = self.a
        lab, done = a.newlabel("L_poll"), a.newlabel("L_polld")
        a(f"s_mov_b32 {sSPIN}, 0x40000")
        a.L(lab)
        a(load)
        a(f"s_sub_u32 {sSPIN}, {sSPIN}, 1")
        a(f"s_cbranch_scc1 {done}")
        a.wait(vm=0)
        a(f"v_cmp_ne_u32 vcc, {sTAG}, {cmps[0]}")
        for c in cmps[1:]:
            a(f"v_cmp_ne_u32 s[82:83], {sTAG}, {c}")
            a("s_or_b64 vcc, vcc, s[82:83]")
        a(f"s_cbranch_vccnz {lab}")
        a.L(done)
        a.wait(vm=0)

    def pub(self, fn):
        a = self.a
        ls, ld = a.newlabel("L_safe"), a.newlabel("L_pubd")
        a(f"s_cmp_eq_u32 {sLOC}, 0")
        a(f"s_cbranch_scc1 {ls}")
        s0 = a.snap()
        fn("")
        a(f"s_branch {ld}")
        s1 = a.snap()
        a.restore(s0)
        a.L(ls)
        fn("sc1")
        a.merge(s1)
        a.L(ld)

    def flag_store(self, vtmp, voff, soff, sc):
        a = self.a
        a(f"s_mov_b64 exec, 1")
        a(f"buffer_store_dword {vtmp}, {voff}, {sWS}, {soff} offen {sc}")
        a(f"s_mov_b64 exec, -1")

    def build(self):
        a = self.a
        a("s_cmp_ge_u32 s2, 256")
        a("s_cbranch_scc1 L_end")
        if self.stamps:
            a("s_memrealtime s[100:101]")
            self.stamp("entry")
        a("""
        s_load_dwordx16 s[4:19], s[0:1], 0
        s_load_dwordx4 s[20:23], s[0:1], 64
        s_load_dwordx2 s[24:25], s[0:1], 80
        s_getpc_b64 s[56:57]
        L_pc:
        v_lshrrev_b32 v1, 6, v0
        v_and_b32 v0, 63, v0
        v_readfirstlane_b32 s3, v1
        """)
        a(f"""
        s_and_b32 {sGX}, s2, 7
        s_lshr_b32 {sJ}, s2, 3
        s_and_b32 s57, s57, 0xffff
        s_mov_b32 s58, L_code_end-L_pc
        s_mov_b32 s59, 0x20000
        v_lshlrev_b32 v6, 4, v0
        """)
        vL16 = "v6"
        a("""
        v_lshrrev_b32 v7, 4, v0             ; g4
        v_and_b32 v8, 15, v0                ; n
        v_lshrrev_b32 v1, 2, v0
        v_and_b32 v2, 3, v0
        v_mul_u32_u24 v1, 6144, v1
        v_lshl_add_u32 v9, v2, 4, v1
        v_lshrrev_b32 v1, 1, v0
        v_and_b32 v2, 1, v0
        v_mul_u32_u24 v1, 3072, v1
        v_lshl_add_u32 v10, v2, 4, v1
        v_lshrrev_b32 v1, 3, v0
        v_and_b32 v2, 7, v0
        v_xor_b32 v2, v2, v7
        v_lshlrev_b32 v1, 10, v1
        v_lshl_add_u32 v11, v2, 4, v1
        v_xor_b32 v12, 64, v11              ; (rh=1)
        v_lshlrev_b32 v13, 1, v0            ; c voffset
        """)
        vG4, vN = "v7", "v8"
        a.wait(lg=0)
        hE = a(f"s_load_dword {sTAG}, s[24:25], 0")
        self.srd(sWM, 18, 512 * 6144)
        self.srd(sC, 16, 1024)
        self.srd(sX, 4, 2048 * 1024)
        a("s_cmp_ge_u32 s2, 96")
        a("s_cbranch_scc1 L_noprod1")
        s0 = a.snap()
        a(f"s_lshl_b32 {T0}, {sW}, 7")
        hC = a(f"buffer_load_ushort v16, v13, {sC}, {T0} offen")
        a(f"""
        s_mul_i32 {T0}, {sW}, {64 * 6144}
        s_lshl_b32 {T1}, s2, 6
        s_add_u32 {T0}, {T0}, {T1}
        s_lshl_b32 {T1}, {sW}, 12
        """)
        for i in range(4):
            a(f"s_add_u32 m0, {T1}, {L_WM + i * 1024}")
            hWM = self.dma("v9", sWM, T0)
            if i < 3:
                a(f"s_add_u32 {T0}, {T0}, {16 * 6144}")
        a.merge(s0)
        a.L("L_noprod1")
        a(f"""
        s_lshl_b32 {T0}, {sGX}, 18
        s_lshl_b32 {T1}, {sJ}, 13
        s_add_u32 {T2}, {T0}, {T1}
        s_lshl_b32 {T1}, {sW}, 10
        s_add_u32 {T2}, {T2}, {T1}
        """)
        a(f"buffer_load_dwordx4 v[20:23], {vL16}, {sX}, {T2} offen")
        self.srd(sWQ, 6, 512 * 3072)
        a(f"""
        s_mul_i32 {T2}, {sW}, {64 * 3072}
        s_lshl_b32 {T1}, {sJ}, 5
        s_add_u32 {T2}, {T2}, {T1}
        s_mul_i32 {T3}, {sW}, 6144
        """)
        for sp in range(2):
            a(f"s_add_u32 m0, {T3}, {L_W + sp * 3072}")
            for p in range(3):
                hW = self.dma("v10", sWQ, T2, off=p * 1024)
            if sp == 0:
                a(f"s_add_u32 {T2}, {T2}, {32 * 3072}")
        a(f"s_cmp_lg_u32 {sW}, 7")
        a("s_cbranch_scc1 L_nopf")
        s0 = a.snap()
        a(f"""
        v_lshlrev_b32 v1, 7, v8
        s_lshl_b32 {T1}, {sJ}, 11
        buffer_load_dword v19, v1, {sCODE}, {T1} offen
        """)
        a.merge(s0)
        a.L("L_nopf")
        XF = lambda T, s: 128 + (s * 2 + T) * 4
        a(f"""
        s_lshl_b32 {T1}, {sW}, 15
        s_add_u32 {T4}, {T0}, {T1}
        s_lshl_b32 {T5}, {sW}, 13
        s_add_u32 {T5}, {T5}, {L_X}
        """)
        hx = {}

        def x_issue(q):
            kk, T = q >> 1, q & 1
            for rh in range(2):
                a(f"s_add_u32 m0, {T5}, {(q & 3) * 2048 + rh * 1024}")
                a(f"s_add_u32 {T1}, {T4}, {(16 * T + 8 * rh) * 1024 + kk * 128}")
                hx[q] = self.dma("v11" if rh == 0 else "v12", sX, T1)

        for q in range(4):
            x_issue(q)
        self.srd(sWS, 24, WS_SIZE)
        self.srd(sOUT, 20, 2048 * 1024)
        a(f"""
        v_lshrrev_b32 v1, 1, {vN}
        v_xor_b32 v1, v1, {vG4}
        v_lshlrev_b32 v1, 4, v1
        v_lshl_add_u32 v1, {vN}, 7, v1
        v_add_u32 v14, {T5}, v1
        v_xor_b32 v15, 64, v14
        """)
        a.waith(hE)
        a(f"""
        s_mul_i32 {sTAG}, {sTAG}, 0x41c64e6d
        s_add_u32 {sTAG}, {sTAG}, 0x3c6ef35f
        s_lshr_b32 {sTQ}, {sJ}, 3
        s_and_b32 {sCG}, {sJ}, 7
        s_lshl_b32 {sGRP}, {sGX}, 21
        s_add_u32 {sGRP}, {sGRP}, {WS_GRP}
        """)
        a("s_cmp_ge_u32 s2, 96")
        a("s_cbranch_scc1 L_noprod2")
        s0 = a.snap()
        a(f"""
        v_lshlrev_b32 v16, 16, v16
        v_mul_f32 v17, {f2u(-LOG2E)}, v16
        v_exp_f32 v17, v17
        s_lshl_b32 {T0}, {sW}, 7
        s_add_u32 {T0}, {T0}, {L_SC}
        v_add_f32 v17, 1.0, v17
        v_rcp_f32 v17, v17
        v_add_u32 v1, {T0}, v13
        v_mul_f32 v16, v16, v17
        v_cvt_pk_bf16_f32 v16, v16, v16
        ds_write_b16 v1, v16
        v_lshrrev_b32 v2, 5, v0             ; h
        v_lshlrev_b32 v1, 4, v2
        v_add_u32 v1, {T0}, v1
        """)
        for i in range(4):
            a(f"ds_read_b128 {vr(24 + 4 * i)}, v1 offset:{32 * i}")
        a(f"""
        v_bfe_u32 v3, v0, 2, 2
        v_lshl_add_u32 v3, v2, 3, v3
        v_lshlrev_b32 v3, 6, v3
        v_and_b32 v4, 1, {vG4}
        v_lshl_add_u32 v3, v4, 5, v3
        v_and_b32 v4, 3, v0
        v_lshl_add_u32 v3, v4, 3, v3
        s_lshl_b32 {T0}, {sW}, 12
        v_add_u32 v3, {T0}, v3
        """)
        a.waith(hWM)
        for i in range(4):
            a(f"ds_read_b64_tr_b16 {vr(40 + 4 * i, 2)}, v3 offset:{L_WM + 1024 * i}")
            a(f"ds_read_b64_tr_b16 {vr(42 + 4 * i, 2)}, v3 offset:{L_WM + 1024 * i + 256}")
        for i in range(4):
            c = "0" if i == 0 else vr(56, 16)
            a(f"v_mfma_f32_32x32x16_bf16 {vr(56, 16)}, {vr(24 + 4 * i)}, {vr(40 + 4 * i)}, {c}")
        a(f"""
        v_and_b32 v1, 31, v0
        v_lshlrev_b32 v1, 5, v1
        s_lshl_b32 {T0}, {sW}, 2
        s_add_u32 {T0}, {T0}, {L_P}
        v_add_u32 v1, {T0}, v1
        ds_write_b32 v1, v56
        """)
        a.wait(lg=0)
        a("s_barrier")
        a(f"s_cmp_lg_u32 {sW}, 0")
        a("s_cbranch_scc1 L_noprod2")
        s1 = a.snap()
        a(f"v_lshlrev_b32 v1, 6, {vN}")
        a(f"v_add_u32 v1, {L_P}, v1")
        for i in range(4):
            a(f"ds_read_b128 {vr(24 + 4 * i)}, v1 offset:{16 * i}")
        a(f"""
        v_pk_add_f32 v[24:25], v[24:25], v[26:27]
        v_pk_add_f32 v[28:29], v[28:29], v[30:31]
        v_pk_add_f32 v[32:33], v[32:33], v[34:35]
        v_pk_add_f32 v[36:37], v[36:37], v[38:39]
        v_pk_add_f32 v[24:25], v[24:25], v[28:29]
        v_pk_add_f32 v[32:33], v[32:33], v[36:37]
        v_add_f32 v24, v24, v25
        v_add_f32 v32, v32, v33
        v_cvt_pk_bf16_f32 v24, v24, v32
        s_lshr_b32 {T0}, s2, 4
        s_cmp_eq_u32 {T0}, 1
        s_cselect_b32 {T1}, 1.0, 0
        s_cmp_eq_u32 {T0}, 4
        s_cselect_b32 {T1}, 1.0, {T1}
        v_lshlrev_b32 v26, 16, v24
        v_and_b32 v27, 0xffff0000, v24
        v_add_f32 v26, {T1}, v26
        v_add_f32 v27, {T1}, v27
        v_cvt_pk_bf16_f32 v24, v26, v27
        v_mov_b32 v25, {sTAG}
        v_lshlrev_b32 v1, 3, v0
        s_lshl_b32 {T0}, s2, 7
        s_add_u32 {T0}, {T0}, {WS_MODG}
        s_mov_b64 exec, 0xffff
        buffer_store_dwordx2 v[24:25], v1, {sWS}, {T0} offen sc1
        s_mov_b64 exec, -1
        """)
        a.merge(s0)
        a.merge(s1)
        a.L("L_noprod2")
        self.stamp("modpub")
        for i in range(4):
            a(f"v_lshlrev_b32 v{24 + 2 * i}, 16, v{20 + i}")
            a(f"v_and_b32 v{25 + 2 * i}, 0xffff0000, v{20 + i}")
        a("""
        v_pk_add_f32 v[32:33], v[24:25], v[26:27]
        v_pk_add_f32 v[34:35], v[28:29], v[30:31]
        v_pk_add_f32 v[32:33], v[32:33], v[34:35]
        v_add_f32 v32, v32, v33
        """)

        def wave_sum(v):
            for m in ("row_shr:1 row_mask:0xf", "row_shr:2 row_mask:0xf", "row_shr:4 row_mask:0xf",
                      "row_shr:8 row_mask:0xf", "row_bcast:15 row_mask:0xa", "row_bcast:31 row_mask:0xc"):
                a(f"v_add_f32_dpp {v}, {v}, {v} {m} bank_mask:0xf")

        wave_sum("v32")
        a(f"v_mul_f32 v32, {f2u(1.0 / 512)}, v32")
        a(f"v_readlane_b32 {T0}, v32, 63")
        for i in range(8):
            a(f"v_subrev_f32 v{24 + i}, {T0}, v{24 + i}")
        a("v_mul_f32 v33, v24, v24")
        for i in range(1, 8):
            a(f"v_fmac_f32 v33, v{24 + i}, v{24 + i}")
        wave_sum("v33")
        a(f"""
        v_mov_b32 v34, {f2u(1e-5)}
        v_fmac_f32 v34, {f2u(1.0 / 512)}, v33
        v_rsq_f32 v34, v34
        v_mov_b32 v33, {sTAG}
        v_mov_b32 v35, {sTAG}
        s_lshl_b32 {T0}, {sGX}, 8
        s_lshl_b32 {T1}, {sJ}, 3
        s_add_u32 {T0}, {T0}, {T1}
        s_add_u32 {T0}, {T0}, {sW}
        s_lshl_b32 {T0}, {T0}, 4
        s_add_u32 {T0}, {T0}, {WS_STATG - 63 * 16}
        s_mov_b32 exec_lo, 0
        s_mov_b32 exec_hi, 0x80000000
        buffer_store_dwordx4 v[32:35], {vL16}, {sWS}, {T0} offen sc1
        s_mov_b64 exec, -1
        """)
        Wp = lambda sp, p: 104 + (sp * 3 + p) * 4
        Wu = lambda sp, p: 56 + (sp * 3 + p) * 8
        a(f"""
        v_lshlrev_b32 v1, 8, {vG4}
        v_lshl_add_u32 v1, {vN}, 3, v1      ; (8*g4 + r)*32 + cc*8
        s_mul_i32 {T0}, {sW}, 6144
        s_add_u32 {T0}, {T0}, {L_W}
        v_add_u32 v1, {T0}, v1
        v_add_u32 v5, {T0}, {vL16}
        """)
        a.waith(hW)
        for sp in range(2):
            for p in range(3):
                o = (sp * 3 + p) * 1024
                a(f"ds_read_b64_tr_b16 {vr(Wp(sp, p), 2)}, v1 offset:{o}")
                a(f"ds_read_b64_tr_b16 {vr(Wp(sp, p) + 2, 2)}, v1 offset:{o + 128}")
        for i in range(24):
            a(f"v_lshlrev_b32 v{56 + 2 * i}, 16, v{104 + i}")
            a(f"v_and_b32 v{57 + 2 * i}, 0xffff0000, v{104 + i}")
        for q in range(16):
            kk, T = q >> 1, q & 1
            a.waith(hx[q])
            a(f"ds_read_b128 {vr(XF(T, 2 * kk))}, v14 offset:{(q & 3) * 2048}")
            h = a(f"ds_read_b128 {vr(XF(T, 2 * kk + 1))}, v15 offset:{(q & 3) * 2048}")
            if q + 4 < 16:
                a.waith(h)
                x_issue(q + 4)
        self.stamp("xdone")
        a(f"""
        v_and_b32 v1, 31, v0
        v_lshrrev_b32 v2, 5, v0
        v_xor_b32 v2, 1, v2
        v_lshl_add_u32 v1, v2, 8, v1
        v_lshlrev_b32 v13, 3, v1
        s_lshl_b32 {T0}, {sW}, 8
        s_add_u32 {T0}, {T0}, {WS_MODG}
        s_lshl_b32 {T2}, {sW}, 10
        s_add_u32 {T2}, {T2}, {L_G}
        """)
        self.poll(f"buffer_load_dwordx2 v[16:17], v13, {sWS}, {T0} offen sc1", ["v17"])
        self.stamp("modgot")
        a(f"""
        s_lshl_b32 {T0}, {sGX}, 12
        s_lshl_b32 {T1}, {sW}, 9
        s_add_u32 {T0}, {T0}, {T1}
        s_add_u32 {T0}, {T0}, {WS_STATG}
        v_and_b32 v12, 0x1f0, {vL16}
        """)
        self.scale_block(3, Wp, Wu, T2, "v5", lds_out=True)
        self.poll(f"buffer_load_dwordx4 v[16:19], v12, {sWS}, {T0} offen sc1", ["v17", "v19"])
        a(f"""
        v_mul_f32 v16, v16, v18
        v_sub_f32 v16, 0, v16
        v_and_b32 v1, 31, v0
        v_lshl_add_u32 v1, v1, 2, {T2}
        ds_write_b32 v1, v18 offset:512
        ds_write_b32 v1, v16 offset:640
        """)
        a.wait(lg=0)
        a("s_barrier")
        self.stamp("wready")
        a(f"v_lshlrev_b32 v1, 6, v0")
        a(f"v_add_u32 v1, {L_UBP}, v1")
        for i in range(4):
            a(f"ds_read_b128 {vr(16 + 4 * i)}, v1 offset:{16 * i}")
        a(f"v_add_u32 v9, {L_W}, {vL16}")
        WB = lambda s, i: 56 + ((s % 3) * 2 + i) * 4

        def wread(s, parts):
            for i, p in enumerate(parts):
                a(f"ds_read_b128 {vr(WB(s, i))}, v9 offset:{s * 3072 + p * 1024}")

        wread(0, (1, 2))
        wread(1, (1, 2))
        a("""
        v_pk_add_f32 v[16:17], v[16:17], v[18:19]
        v_pk_add_f32 v[20:21], v[20:21], v[22:23]
        v_pk_add_f32 v[24:25], v[24:25], v[26:27]
        v_pk_add_f32 v[28:29], v[28:29], v[30:31]
        v_pk_add_f32 v[16:17], v[16:17], v[20:21]
        v_pk_add_f32 v[24:25], v[24:25], v[28:29]
        v_pk_add_f32 v[16:17], v[16:17], v[24:25]
        """)
        a(f"""
        v_lshl_add_u32 v1, v0, 2, {T2}
        ds_write_b32 v1, v16
        ds_write_b32 v1, v17 offset:256
        v_lshl_add_u32 v1, {vG4}, 4, {T2}
        v_lshl_add_u32 v2, {vN}, 2, {T2}
        ds_read_b128 v[80:83], v1               ; u_q
        ds_read_b128 v[84:87], v1 offset:256    ; b_q
        ds_read_b128 v[88:91], v1 offset:64     ; u_k
        ds_read_b128 v[92:95], v1 offset:320    ; b_k
        ds_read2_b32 v[96:97], v2 offset0:32 offset1:96    ; u_v, b_v
        ds_read2_b32 v[98:99], v2 offset0:128 offset1:160  ; r, mr (T0)
        ds_read2_b32 v[100:101], v2 offset0:144 offset1:176 ; r, mr (T1)
        ds_read_b128 v[104:107], v1 offset:512  ; r tokens T0
        ds_read_b128 v[108:111], v1 offset:576  ; r tokens T1
        ds_read_b128 v[112:115], v1 offset:640
        ds_read_b128 v[116:119], v1 offset:704
        """)
        aK, aV, aQ = (16, 20), (24, 28), (32, 36)
        for s in range(16):
            if s + 2 < 16:
                wread(s + 2, (1, 2))
            for T in range(2):
                c = "0" if s == 0 else vr(aK[T])
                a(f"v_mfma_f32_16x16x32_bf16 {vr(aK[T])}, {vr(WB(s, 0))}, {vr(XF(T, s))}, {c}")
            for T in range(2):
                c = "0" if s == 0 else vr(aV[T])
                a(f"v_mfma_f32_16x16x32_bf16 {vr(aV[T])}, {vr(XF(T, s))}, {vr(WB(s, 1))}, {c}")
            if s == 6:
                for T in range(2):
                    for i in range(4):
                        a(f"v_fma_f32 v{40 + 4 * T + i}, v{99 + 2 * T}, v{88 + i}, v{92 + i}")
            if s == 8:
                for i in range(8):
                    a(f"v_fma_f32 v{112 + i}, v{112 + i}, v96, v97")
            if s == 10:
                for T in range(2):
                    for i in range(4):
                        a(f"v_fma_f32 v{48 + 4 * T + i}, v{99 + 2 * T}, v{80 + i}, v{84 + i}")
            if s == 12:
                a(f"""
                v_bfe_u32 v1, v0, 2, 2
                v_bfe_u32 v2, v0, 4, 1
                v_lshl_add_u32 v1, v1, 1, v2
                v_and_b32 v2, 0x23, v0
                v_lshl_add_u32 v1, v1, 2, v2
                v_lshlrev_b32 v10, 4, v1
                s_lshl_b32 {sKVB}, {sJ}, 17
                s_add_u32 {sKVB}, {sKVB}, {WS_KV}
                s_lshl_b32 {T0}, {sGX}, 3
                s_add_u32 {T0}, {T0}, {sW}
                s_lshl_b32 {T0}, {T0}, 11
                s_add_u32 {T0}, {T0}, {sKVB}
                s_mul_i32 {T1}, {sW}, {KVS}
                v_add_u32 v11, {T1}, v10
                v_add_u32 v12, {T1}, {vL16}
                """)
        WQ = lambda s: 56 + (s % 6) * 4
        for s in range(4):
            a(f"ds_read_b128 {vr(WQ(s))}, v9 offset:{s * 3072}")
        for T in range(2):
            for i in range(4):
                a(f"v_fma_f32 v{aK[T] + i}, v{98 + 2 * T}, v{aK[T] + i}, v{40 + 4 * T + i}")
        a("""
        v_cvt_pk_bf16_f32 v40, v16, v17
        v_cvt_pk_bf16_f32 v41, v18, v19
        v_cvt_pk_bf16_f32 v42, v20, v21
        v_cvt_pk_bf16_f32 v43, v22, v23
        """)
        for i in range(8):
            a(f"v_fma_f32 v{24 + i}, v{104 + i}, v{24 + i}, v{112 + i}")
        a("""
        v_permlane16_swap_b32 v40, v42
        v_permlane16_swap_b32 v41, v43
        v_cvt_pk_bf16_f32 v44, v24, v25
        v_cvt_pk_bf16_f32 v45, v26, v27
        v_cvt_pk_bf16_f32 v46, v28, v29
        v_cvt_pk_bf16_f32 v47, v30, v31
        """)
        a(f"buffer_store_dwordx4 v[40:43], v10, {sWS}, {T0} offen sc1")
        hKV = a(f"buffer_store_dwordx4 v[44:47], {vL16}, {sWS}, {T0} offen offset:1024 sc1")
        a(f"""
        ds_write_b128 v11, v[40:43]
        ds_write_b128 v12, v[44:47] offset:1024
        v_mov_b32 v120, 0x3f803f80
        v_mov_b32 v121, 0x3f803f80
        v_mov_b32 v122, 0x3f803f80
        v_mov_b32 v123, 0x3f803f80
        v_mov_b32 v1, {T1}
        ds_write_b128 v1, v[120:123] offset:2048
        """)
        self.stamp("kvdone")
        for s in range(16):
            if s + 4 < 16:
                a(f"ds_read_b128 {vr(WQ(s + 4))}, v9 offset:{(s + 4) * 3072}")
            for T in range(2):
                c = "0" if s == 0 else vr(aQ[T])
                a(f"v_mfma_f32_16x16x32_bf16 {vr(aQ[T])}, {vr(WQ(s))}, {vr(XF(T, s))}, {c}")
            if s == 4:
                a(f"""
                v_mov_b32 v3, {vL16}
                v_lshrrev_b32 v1, 5, v0
                v_lshlrev_b32 v1, 8, v1
                v_add_u32 v2, 1024, v1
                v_lshl_add_u32 v4, {vN}, 4, v2
                s_mov_b32 vcc_lo, 0x0ff00000
                s_mov_b32 vcc_hi, 0x0ff00000
                v_cndmask_b32 v4, v4, v2, vcc
                v_add_u32 v5, 512, v4
                v_mov_b32 v1, 2048
                s_mov_b32 vcc_lo, 0xf00f0000
                s_mov_b32 vcc_hi, 0xf00f0000
                v_cndmask_b32 v4, v4, v1, vcc
                v_cndmask_b32 v5, v5, v1, vcc
                v_mov_b32 v2, 0xdddddddd
                """)
            if s == 8:
                a(f"""
                s_lshl_b32 {T0}, {sJ}, 3
                s_add_u32 {T0}, {T0}, {sGX}
                s_lshl_b32 {T0}, {T0}, 7
                s_lshl_b32 {T1}, {sW}, 2
                s_add_u32 {T0}, {T0}, {T1}
                s_add_u32 {T0}, {T0}, {WS_KVFLAG}
                v_mov_b32 v124, {sTAG}
                """)
        a.waith(hKV)
        self.flag_store("v124", vL16, T0, "sc1")
        for T in range(2):
            for i in range(4):
                a(f"v_fma_f32 v{aQ[T] + i}, v{98 + 2 * T}, v{aQ[T] + i}, v{48 + 4 * T + i}")
        for i in range(8):
            a(f"v_mul_f32 v{32 + i}, {f2u(QSCALE)}, v{32 + i}")
        a("""
        v_cvt_pk_bf16_f32 v64, v32, v33
        v_cvt_pk_bf16_f32 v65, v34, v35
        v_cvt_pk_bf16_f32 v66, v36, v37
        v_cvt_pk_bf16_f32 v67, v38, v39
        v_permlane16_swap_b32 v64, v66
        v_permlane16_swap_b32 v65, v67
        """)
        a.wait(lg=0)
        a("s_barrier")
        self.stamp("B0", (0, 1))
        if self.stop == "qkv":
            a(f"""
            s_lshl_b32 {T0}, {sW}, 5
            s_add_u32 {T0}, {T0}, {sJ}
            s_lshl_b32 {T0}, {T0}, 10
            s_add_u32 {T0}, {T0}, {sGRP}
            buffer_store_dwordx4 v[64:67], {vL16}, {sWS}, {T0} offen
            """)
            return self.finish()
        self.attention()
        if self.stop == "attn":
            return self.finish()
        self.post()
        return self.finish()

    def scale_block(self, nparts, Wp, Wu, sG, vout, lds_out):
        a = self.a
        base = self.sb_tmp if hasattr(self, "sb_tmp") else 20
        GS = lambda sp: base + 4 * sp
        ACC = lambda p: base + 8 + 4 * p
        GF = lambda sp: base + 20 + 8 * sp
        g, t0, t1, a1, a2 = self.sb_regs if hasattr(self, "sb_regs") else ("v16", 18, 19, "v1", "v2")
        a(f"""
        v_lshlrev_b32 v{t0}, 16, {g}
        v_and_b32 v{t1}, 0xffff0000, {g}
        v_lshl_add_u32 {a1}, v0, 3, {sG}
        v_lshl_add_u32 {a2}, v0, 2, {sG}
        ds_write_b64 {a1}, v[{t0}:{t1}]
        ds_write_b32 {a2}, {g} offset:512
        v_lshl_add_u32 {a1}, v7, 5, {sG}
        v_and_b32 {a2}, 1, v0
        v_lshlrev_b32 {a2}, 7, {a2}
        v_lshl_add_u32 {a2}, v7, 4, {a2}
        v_add_u32 {a2}, {sG}, {a2}
        """)
        for sp in range(2):
            a(f"ds_read_b128 {vr(GF(sp))}, {a1} offset:{sp * 128}")
            a(f"ds_read_b128 {vr(GF(sp) + 4)}, {a1} offset:{sp * 128 + 16}")
        for sp in range(2):
            a(f"ds_read_b128 {vr(GS(sp))}, {a2} offset:{512 + sp * 64}")
        for sp in range(2):
            for p in range(nparts):
                u = Wu(sp, p)
                for i in range(4):
                    a(f"v_pk_mul_f32 {vr(u + 2 * i, 2)}, {vr(u + 2 * i, 2)}, {vr(GF(sp) + 2 * i, 2)}")
                for i in range(4):
                    a(f"v_cvt_pk_bf16_f32 v{u + i}, v{u + 2 * i}, v{u + 2 * i + 1}")
                if lds_out:
                    a(f"ds_write_b128 {vout}, {vr(u)} offset:{(sp * nparts + p) * 1024}")
        for sp in range(2):
            for p in range(nparts):
                c = "0" if sp == 0 else vr(ACC(p))
                a(f"v_mfma_f32_16x16x32_bf16 {vr(ACC(p))}, {vr(GS(sp))}, {vr(Wp(sp, p))}, {c}")
        a(f"""
        s_lshl_b32 {T1}, {sW}, 3
        s_add_u32 {T1}, {T1}, {L_UBP}
        v_lshl_add_u32 {a1}, v8, 6, {T1}
        """)
        for p in range(nparts):
            a(f"ds_write_b64 {a1}, {vr(ACC(p), 2)} offset:{p * 1024}")

    def attention(self):
        a = self.a
        vL16 = "v6"
        S = (16, 32)
        O, Q, K, V2 = 48, 64, 68, 72
        V1 = (76, 80)
        base = {"v3": 0, "v4": 0, "v5": 0}

        def rd(dst, addr, t):
            off = t * KVS - base[addr]
            if off > 65535:
                a(f"v_add_u32 {addr}, {off}, {addr}")
                base[addr] += off
                off = 0
            return a(f"ds_read_b128 {vr(dst)}, {addr} offset:{off}")

        def kv_dma(chunk, col):
            a(f"""
            s_add_u32 {T0}, {sGX}, {chunk}
            s_and_b32 {T0}, {T0}, 7
            s_lshl_b32 {T0}, {T0}, 3
            s_add_u32 {T0}, {T0}, {col}
            s_lshl_b32 {T0}, {T0}, 11
            s_add_u32 {T0}, {T0}, {sKVB}
            s_mul_i32 {T1}, {col}, {KVS}
            s_add_u32 m0, {T1}, {chunk * 8 * KVS}
            """)
            self.dma(vL16, sWS, T0, sc="sc1")
            return self.dma(vL16, sWS, T0, off=1024, sc="sc1")

        H = {}
        side = {}

        def at(t, fn):
            side.setdefault(t, []).append(fn)

        def s0_poll():
            a(f"s_cmp_ge_u32 {sW}, 4")
            a("s_cbranch_scc1 L_s0skip")
            s0 = a.snap()
            a(f"""
            v_and_b32 v1, 7, v0
            v_lshlrev_b32 v1, 7, v1
            v_bfe_u32 v84, v0, 3, 1
            v_lshl_add_u32 v1, v84, 4, v1
            s_lshl_b32 {T0}, {sJ}, 10
            s_lshl_b32 {T1}, {sW}, 2
            s_add_u32 {T0}, {T0}, {T1}
            s_add_u32 {T0}, {T0}, {WS_KVFLAG}
            """)
            self.poll(f"buffer_load_dword v84, v1, {sWS}, {T0} offen sc1", ["v84"])
            self.stamp("kvflag", 1)
            a(f"s_add_u32 {T2}, {sW}, 4")
            for ch in (1, 2):
                kv_dma(ch, sW)
                H[ch] = kv_dma(ch, T2)
            a("s_setprio 0")
            a.merge(s0)
            a.L("L_s0skip")

        at(3, s0_poll)
        for c in range(1, 8):
            def bar(c=c):
                a.waith(H[c], *H.get(("extra", c), []))
                a.wait(lg=0)
                self.stamp(f"pre{c}", 2)
                a("s_barrier")
                self.stamp(f"bar{c}", (1, 2))
                a("s_setprio 3")
                if c + 2 < 8:
                    H[c + 2] = kv_dma(c + 2, sW)
            at(8 * c - 2, bar)
            at(8 * c + 2, lambda: a("s_setprio 2"))
            at(8 * c + 4, lambda: a("s_setprio 1"))
            at(8 * c + 5, lambda: a("s_setprio 0"))
        self.side_work(at, H)

        a(f"""
        v_and_b32 v1, 7, v0
        v_mul_u32_u24 v1, {8 * KVS}, v1
        s_mul_i32 {T1}, {sW}, {KVS}
        v_add_u32 v1, {T1}, v1
        """)
        rd(K, "v3", 0)
        rd(V1[0], "v4", 0)
        rd(V1[1], "v4", 1)
        a("ds_write_b128 v1, v[120:123] offset:2048")
        a(f"s_cmp_ge_u32 {sW}, 4")
        a(f"s_cbranch_scc1 L_prio0")
        a("s_setprio 1")
        a.L("L_prio0")
        for i in range(16):
            a(f"v_mov_b32 v{O + i}, 0")
        a(f"v_mfma_f32_32x32x16_bf16 {vr(S[0], 16)}, {vr(K)}, {vr(Q)}, 0")
        rd(K, "v3", 1)
        for t in range(64):
            Sa, Sb = S[t & 1], S[(t + 1) & 1]
            a.C(f"tile {t}")
            for fn in side.get(t, []):
                fn()
            e = lambda i: a(f"v_exp_f32 v{Sa + i}, v{Sa + i}")
            e(0)
            if t > 0 and len(a.lg) > 1:
                a.wait(lg=1)
            e(1)
            if t > 0:
                a(f"v_smfmac_f32_32x32x32_bf16 {vr(O, 16)}, {vr(V2)}, {vr(Sb + 8, 8)}, v2")
            rd(V2, "v5", t)
            for i in (2, 3, 4):
                e(i)
            if t + 1 < 64:
                a(f"v_mfma_f32_32x32x16_bf16 {vr(Sb, 16)}, {vr(K)}, {vr(Q)}, 0")
                if t + 2 < 64:
                    rd(K, "v3", t + 2)
            for i in (5, 6, 7, 8, 9):
                e(i)
            a(f"v_smfmac_f32_32x32x32_bf16 {vr(O, 16)}, {vr(V1[t & 1])}, {vr(Sa, 8)}, v2")
            if t + 2 < 64:
                rd(V1[t & 1], "v4", t + 2)
            for i in range(10, 16):
                e(i)
        a(f"v_smfmac_f32_32x32x32_bf16 {vr(O, 16)}, {vr(V2)}, {vr(S[1] + 8, 8)}, v2")
        a("s_setprio 0")
        a(f"""
        s_mov_b32 s82, 0
        s_mov_b32 s83, -1
        s_mov_b32 {T0}, {f2u(2.0 ** -40)}
        s_mov_b32 {T1}, {f2u(2.0 ** 40)}
        v_cndmask_b32 v16, v{O + 8}, v{O + 12}, s[82:83]
        v_cmp_nle_f32 vcc, {T0}, v16
        v_cmp_nge_f32 s[82:83], {T1}, v16
        s_or_b64 vcc, vcc, s[82:83]
        """)
        if self.force_slow:
            a("s_branch L_slow")
        else:
            a("s_cbranch_vccnz L_slow")
        self.slow_state = a.snap()
        self.slow_base = dict(base)
        a.L("L_attn_done")
        self.stamp("attn", (0, 1))
        a(f"""
        v_rcp_f32 v16, v16
        s_lshl_b32 {T0}, {sW}, 5
        s_add_u32 {T0}, {T0}, {sJ}
        s_lshl_b32 {T0}, {T0}, 10
        s_add_u32 {T0}, {T0}, {sGRP}
        """)
        for i in range(8):
            a(f"v_mul_f32 v{O + i}, v16, v{O + i}")
        for i in range(4):
            a(f"v_cvt_pk_bf16_f32 v{20 + i}, v{O + 2 * i}, v{O + 2 * i + 1}")
        a(f"""
        s_lshr_b32 {T1}, {sW}, 1
        s_lshl_b32 {T1}, {T1}, 8
        s_lshl_b32 {T2}, {sJ}, 3
        s_add_u32 {T1}, {T1}, {T2}
        s_and_b32 {T2}, {sW}, 1
        s_lshl_b32 {T2}, {T2}, 2
        s_add_u32 {T1}, {T1}, {T2}
        s_add_u32 {T1}, {T1}, {sGRP}
        s_add_u32 {T1}, {T1}, {G_OFLAG}
        v_mov_b32 v17, {sTAG}
        """)

        def st(sc):
            a(f"buffer_store_dwordx4 v[20:23], {vL16}, {sWS}, {T0} offen {sc}")
            a.wait(vm=0)
            self.flag_store("v17", vL16, T1, sc)
        self.pub(st)

    def slow_path(self):
        a = self.a
        a.restore(self.slow_state)
        O, Q, K, V2, V1 = 48, 64, 68, 72, 76
        a.L("L_slow")
        a.wait(vm=0, lg=0)
        for r in ("v3", "v4", "v5"):
            a(f"v_subrev_u32 {r}, {self.slow_base[r]}, {r}")
        a(f"""
        v_mov_b32 v32, 0xff800000
        v_mov_b32 v1, v3
        s_mov_b32 {T0}, 64
        L_slow1:
        ds_read_b128 {vr(K)}, v1
        v_add_u32 v1, {KVS}, v1
        v_mfma_f32_32x32x16_bf16 v[16:31], {vr(K)}, {vr(Q)}, 0
        """)
        for i in range(8):
            a(f"v_max3_f32 v32, v32, v{16 + 2 * i}, v{17 + 2 * i}")
        a(f"""
        s_sub_u32 {T0}, {T0}, 1
        s_cmp_lg_u32 {T0}, 0
        s_cbranch_scc1 L_slow1
        v_mov_b32 v33, v32
        v_permlane32_swap_b32 v32, v33
        v_max_f32 v32, v32, v33
        v_sub_f32 v32, 0, v32
        """)
        for i in range(1, 16):
            a(f"v_mov_b32 v{32 + i}, v32")
        for i in range(16):
            a(f"v_mov_b32 v{O + i}, 0")
        a(f"""
        s_mov_b32 {T0}, 64
        L_slow2:
        ds_read_b128 {vr(K)}, v3
        ds_read_b128 {vr(V1)}, v4
        ds_read_b128 {vr(V2)}, v5
        v_add_u32 v3, {KVS}, v3
        v_add_u32 v4, {KVS}, v4
        v_add_u32 v5, {KVS}, v5
        s_waitcnt lgkmcnt(0)
        v_mfma_f32_32x32x16_bf16 v[16:31], {vr(K)}, {vr(Q)}, v[32:47]
        """)
        for i in range(16):
            a(f"v_exp_f32 v{16 + i}, v{16 + i}")
        a(f"""
        v_smfmac_f32_32x32x32_bf16 {vr(O, 16)}, {vr(V1)}, v[16:23], v2
        v_smfmac_f32_32x32x32_bf16 {vr(O, 16)}, {vr(V2)}, v[24:31], v2
        s_sub_u32 {T0}, {T0}, 1
        s_cmp_lg_u32 {T0}, 0
        s_cbranch_scc1 L_slow2
        s_mov_b32 s82, 0
        s_mov_b32 s83, -1
        v_cndmask_b32 v16, v{O + 8}, v{O + 12}, s[82:83]
        s_branch L_attn_done
        """)

    def side_work(self, at, H):
        a = self.a
        vL16 = "v6"
        X = {}

        def pf_issue():
            a(f"""
            s_sub_u32 {sTASK}, 255, s2
            s_lshl_b32 {T3}, {sW}, 11
            s_add_u32 {T3}, {T3}, {L_PF}
            s_mov_b32 s55, 0x20000
            v_lshrrev_b32 v84, 1, v0
            v_and_b32 v85, 1, v0
            v_lshlrev_b32 v85, 4, v85
            s_cmp_ge_u32 {sTASK}, 86
            s_cbranch_scc1 L_pf_n1
            s_mov_b32 s52, s12
            s_mov_b32 s53, s13
            s_mov_b32 s54, {512 * 2752}
            v_mul_u32_u24 v84, 2752, v84
            v_add_u32 v84, v84, v85
            s_mul_i32 {T0}, {sW}, {64 * 2752}
            s_lshl_b32 {T1}, {sTASK}, 5
            s_add_u32 {T0}, {T0}, {T1}
            s_add_u32 {T1}, {T0}, {32 * 2752}
            s_lshl_b32 {sPFD}, {sTASK}, 14
            s_add_u32 {sPFD}, {sPFD}, {WS_W1F - L_PF}
            s_add_u32 {sPFD}, {sPFD}, {T3}
            v_lshlrev_b32 v86, 8, v7
            v_lshl_add_u32 v86, v8, 3, v86
            v_add_u32 v87, 128, v86
            v_add_u32 v88, 1024, v86
            v_add_u32 v89, 1024, v87
            s_branch L_pf_go
            L_pf_n1:
            s_cmp_ge_u32 {sTASK}, 172
            s_cbranch_scc1 L_pf_n2
            s_mov_b32 s52, s14
            s_mov_b32 s53, s15
            s_mov_b32 s54, {1376 * 1024}
            v_lshrrev_b32 v84, 3, v0
            v_and_b32 v85, 7, v0
            v_lshlrev_b32 v85, 4, v85
            v_lshl_add_u32 v84, v84, 10, v85
            s_sub_u32 {T2}, {sTASK}, 86
            s_lshl_b32 {T0}, {T2}, 14
            s_lshl_b32 {T1}, {sW}, 7
            s_add_u32 {T0}, {T0}, {T1}
            s_add_u32 {T1}, {T0}, 8192
            s_mul_i32 {sPFD}, {sW}, {86 * 2048}
            s_lshl_b32 {T2}, {T2}, 11
            s_add_u32 {sPFD}, {sPFD}, {T2}
            s_add_u32 {sPFD}, {sPFD}, {WS_W2F}
            v_lshrrev_b32 v86, 5, v0
            v_bfe_u32 v87, v0, 2, 2
            v_lshl_add_u32 v86, v86, 3, v87
            v_lshlrev_b32 v86, 7, v86
            v_and_b32 v87, 1, v7
            v_lshl_add_u32 v86, v87, 5, v86
            v_and_b32 v87, 3, v0
            v_lshl_add_u32 v86, v87, 3, v86
            v_add_u32 v87, 512, v86
            v_add_u32 v88, 64, v86
            v_add_u32 v89, 64, v87
            s_branch L_pf_go
            L_pf_n2:
            s_mov_b32 s52, s8
            s_mov_b32 s53, s9
            s_mov_b32 s54, {512 * 1024}
            v_lshl_add_u32 v84, v84, 10, v85
            s_sub_u32 {T2}, {sTASK}, 172
            s_lshl_b32 {T0}, {sW}, 16
            s_lshl_b32 {T1}, {T2}, 5
            s_add_u32 {T0}, {T0}, {T1}
            s_add_u32 {T1}, {T0}, {32 * 1024}
            s_lshl_b32 {sPFD}, {T2}, 14
            s_add_u32 {sPFD}, {sPFD}, {(WS_WOF - L_PF) & 0xffffffff}
            s_add_u32 {sPFD}, {sPFD}, {T3}
            v_lshrrev_b32 v86, 5, v0
            v_lshlrev_b32 v86, 9, v86
            v_and_b32 v87, 31, v0
            v_lshl_add_u32 v86, v87, 3, v86
            v_add_u32 v87, 256, v86
            v_add_u32 v88, 1024, v86
            v_add_u32 v89, 1024, v87
            L_pf_go:
            s_mov_b32 m0, {T3}
            v_add_u32 v86, {T3}, v86
            """)
            self.dma("v84", sPF, T0)
            a(f"s_add_u32 m0, {T3}, 1024")
            a(f"v_add_u32 v87, {T3}, v87")
            X["pf"] = self.dma("v84", sPF, T1)
            a(f"v_add_u32 v88, {T3}, v88")
            a(f"v_add_u32 v89, {T3}, v89")

        def pf_do():
            a.waith(X["pf"])
            a("""
            ds_read_b64_tr_b16 v[128:129], v86
            ds_read_b64_tr_b16 v[130:131], v87
            ds_read_b64_tr_b16 v[132:133], v88
            ds_read_b64_tr_b16 v[134:135], v89
            """)
            a(f"s_cmp_ge_u32 {sTASK}, 86")
            a("s_cbranch_scc1 L_pf_plain")
            s0 = a.snap()
            a(f"""
            s_lshl_b32 {T0}, {sW}, 8
            s_add_u32 {T0}, {T0}, {WS_MODG + 768 * 8}
            s_lshl_b32 {T2}, {sW}, 10
            s_add_u32 {T2}, {T2}, {L_G}
            """)
            self.poll(f"buffer_load_dwordx2 v[84:85], v13, {sWS}, {T0} offen sc1", ["v85"])
            for i in range(8):
                a(f"v_lshlrev_b32 v{136 + 2 * i}, 16, v{128 + i}")
                a(f"v_and_b32 v{137 + 2 * i}, 0xffff0000, v{128 + i}")
            self.sb_tmp = 152
            self.sb_regs = ("v84", 86, 87, "v88", "v89")
            self.scale_block(1, lambda sp, p: 128 + 4 * sp, lambda sp, p: 136 + 8 * sp, T2, None, lds_out=False)
            for i in range(4):
                a(f"v_mov_b32 v{128 + i}, v{136 + i}")
                a(f"v_mov_b32 v{132 + i}, v{144 + i}")
            a.merge(s0)
            a.L("L_pf_plain")
            a.wait(lg=0)
            a(f"s_cmp_ge_u32 {sTASK}, 204")
            a("s_cbranch_scc1 L_pf_none")
            s0 = a.snap()
            a(f"buffer_store_dwordx4 v[128:131], {vL16}, {sWS}, {sPFD} offen sc1")
            h = a(f"buffer_store_dwordx4 v[132:135], {vL16}, {sWS}, {sPFD} offen offset:1024 sc1")
            H[("extra", 3)] = [h]
            a.merge(s0)
            a.L("L_pf_none")
            self.stamp("pfdo", 1)

        def pf_flag():
            a(f"s_cmp_lg_u32 {sW}, 0")
            a("s_cbranch_scc1 L_pf_noflag")
            s0 = a.snap()
            a(f"s_cmp_ge_u32 {sTASK}, 86")
            a("s_cbranch_scc1 L_pf_noub")
            s1 = a.snap()
            a(f"v_lshlrev_b32 v84, 6, v8")
            a(f"v_add_u32 v84, {L_UBP}, v84")
            for i in range(4):
                a(f"ds_read_b128 {vr(128 + 4 * i)}, v84 offset:{16 * i}")
            a(f"""
            v_pk_add_f32 v[128:129], v[128:129], v[130:131]
            v_pk_add_f32 v[132:133], v[132:133], v[134:135]
            v_pk_add_f32 v[136:137], v[136:137], v[138:139]
            v_pk_add_f32 v[140:141], v[140:141], v[142:143]
            v_pk_add_f32 v[128:129], v[128:129], v[132:133]
            v_pk_add_f32 v[136:137], v[136:137], v[140:141]
            v_pk_add_f32 v[128:129], v[128:129], v[136:137]
            v_lshlrev_b32 v84, 2, v8
            s_lshl_b32 {T0}, {sTASK}, 7
            s_add_u32 {T0}, {T0}, {WS_UB2}
            buffer_store_dword v128, v84, {sWS}, {T0} offen sc1
            buffer_store_dword v129, v84, {sWS}, {T0} offen offset:64 sc1
            """)
            a.wait(vm=0)
            a.merge(s1)
            a.L("L_pf_noub")
            a(f"""
            s_getreg_b32 {T1}, hwreg(HW_REG_XCC_ID, 0, 4)
            s_xor_b32 {T1}, {T1}, {sTAG}
            v_mov_b32 v84, {T1}
            s_lshl_b32 {T0}, {sGX}, 5
            s_add_u32 {T0}, {T0}, {sJ}
            s_lshl_b32 {T0}, {T0}, 2
            s_add_u32 {T0}, {T0}, {WS_PFLAG}
            """)
            self.flag_store("v84", vL16, T0, "sc1")
            a.merge(s0)
            a.L("L_pf_noflag")

        def pf_poll():
            lab, done = a.newlabel("L_poll"), a.newlabel("L_polld")
            a(f"s_mov_b32 {sSPIN}, 0x40000")
            a(f"s_mov_b32 {T0}, {WS_PFLAG}")
            a.L(lab)
            a(f"buffer_load_dwordx4 v[84:87], {vL16}, {sWS}, {T0} offen sc1")
            a(f"s_sub_u32 {sSPIN}, {sSPIN}, 1")
            a(f"s_cbranch_scc1 {done}")
            a.wait(vm=0)
            for i in range(4):
                a(f"v_xor_b32 v{84 + i}, {sTAG}, v{84 + i}")
            a("""
            v_or3_b32 v88, v84, v85, v86
            v_or_b32 v88, v88, v87
            v_cmp_lt_u32 vcc, 15, v88
            """)
            a(f"s_cbranch_vccnz {lab}")
            a.L(done)
            a.wait(vm=0)
            a(f"""
            s_getreg_b32 {T1}, hwreg(HW_REG_XCC_ID, 0, 4)
            v_and_b32 v89, v84, v85
            v_and_b32 v90, v86, v87
            v_and_b32 v89, v89, v90
            v_cmp_ne_u32 vcc, {T1}, v88
            v_cmp_ne_u32 s[82:83], {T1}, v89
            s_or_b64 vcc, vcc, s[82:83]
            s_lshl_b32 {T0}, {sGX}, 3
            s_lshr_b64 s[82:83], vcc, {T0}
            s_and_b32 {T0}, s82, 0xff
            s_cselect_b32 {sLOC}, 0, 1
            """)
            self.stamp("pfpoll", 1)
            if self.force_safe:
                a(f"s_mov_b32 {sLOC}, 0")
            a(f"""
            s_mul_i32 {T0}, {sCG}, 11
            s_cmp_eq_u32 {sCG}, 7
            s_cselect_b32 {T0}, 76, {T0}
            s_lshl_b32 {T1}, {sW}, 1
            s_add_u32 {sU0}, {T0}, {T1}
            s_add_u32 {sU1}, {sU0}, 1
            s_add_u32 {T1}, {T0}, {sW}
            s_add_u32 {T1}, {T1}, 4
            s_min_u32 {T1}, {T1}, 85
            s_lshl_b32 {T2}, {sCG}, 2
            s_add_u32 {T2}, {T2}, {sW}
            s_sub_u32 {T2}, {T2}, 4
            s_lshl_b32 {T2}, {T2}, 14
            s_add_u32 {T2}, {T2}, {WS_WOF}
            s_lshl_b32 {sB0}, {sU0}, 14
            s_add_u32 {sB0}, {sB0}, {WS_W1F}
            s_cmp_ge_u32 {sW}, 4
            s_cselect_b32 {sB0}, {T2}, {sB0}
            s_cselect_b32 {sU1}, {T1}, {sU1}
            s_cselect_b32 {sU0}, {T1}, {sU0}
            s_lshl_b32 {sB1}, {sU1}, 14
            s_add_u32 {sB1}, {sB1}, {WS_W1F}
            """)

        def wload(i):
            def f():
                for sb, rb in ((sB0, 128), (sB1, 192)):
                    for k in range(4):
                        o = f" offset:{k * 1024}" if k else ""
                        a(f"buffer_load_dwordx4 {vr(rb + (4 * i + k) * 4)}, {vL16}, {sWS}, {sb} offen{o} sc1")
                    a(f"s_add_u32 {sb}, {sb}, 4096")
            return f

        def small_loads():
            a(f"""
            v_lshlrev_b32 v84, 4, v7
            s_lshl_b32 {T0}, {sU0}, 7
            s_add_u32 {T0}, {T0}, {WS_UB2}
            s_lshl_b32 {T1}, {sU1}, 7
            s_add_u32 {T1}, {T1}, {WS_UB2}
            buffer_load_dwordx4 v[104:107], v84, {sWS}, {T0} offen sc1
            buffer_load_dwordx4 v[108:111], v84, {sWS}, {T0} offen offset:64 sc1
            buffer_load_dwordx4 v[112:115], v84, {sWS}, {T1} offen sc1
            buffer_load_dwordx4 v[116:119], v84, {sWS}, {T1} offen offset:64 sc1
            s_lshl_b32 {T2}, {sCG}, 2
            s_and_b32 {T0}, {sW}, 3
            s_add_u32 {T2}, {T2}, {T0}
            s_lshl_b32 {T0}, {T2}, 6
            s_add_u32 {T0}, {T0}, {WS_MODG + 512 * 8}
            buffer_load_dwordx4 v[100:103], v84, {sWS}, {T0} offen sc1
            v_and_b32 v85, 7, v0
            v_lshlrev_b32 v85, 5, v85
            s_lshl_b32 {T0}, {sCG}, 8
            s_add_u32 {T0}, {T0}, {WS_MODG + 1280 * 8}
            buffer_load_dwordx4 v[120:123], v85, {sWS}, {T0} offen sc1
            buffer_load_dwordx4 v[124:127], v85, {sWS}, {T0} offen offset:16 sc1
            v_lshlrev_b32 v85, 10, v8
            v_lshl_add_u32 v85, v7, 3, v85
            s_lshl_b32 {T0}, {sGX}, 18
            s_lshl_b32 {T1}, {sTQ}, 16
            s_add_u32 {T0}, {T0}, {T1}
            s_lshl_b32 {T2}, {T2}, 5
            s_add_u32 {T0}, {T0}, {T2}
            """)
            for T in range(4):
                a(f"buffer_load_dwordx2 {vr(92 + 2 * T, 2)}, v85, {sX}, {T0} offen")
                if T < 3:
                    a(f"s_add_u32 {T0}, {T0}, 16384")

        at(7, pf_issue)
        at(15, pf_do)
        at(23, pf_flag)
        at(31, pf_poll)
        at(33, wload(0))
        at(39, wload(1))
        at(47, wload(2))
        at(55, wload(3))
        at(57, small_loads)

    def post(self):
        a = self.a
        vL16 = "v6"
        a("s_barrier")
        a(f"""
        v_and_b32 v1, 7, v0
        v_lshlrev_b32 v1, 2, v1
        s_lshl_b32 {T0}, {sTQ}, 8
        s_lshl_b32 {T1}, {sW}, 5
        s_add_u32 {T0}, {T0}, {T1}
        s_add_u32 {T0}, {T0}, {sGRP}
        s_add_u32 {T0}, {T0}, {G_OFLAG}
        s_lshl_b32 {T2}, {sTQ}, 16
        s_lshl_b32 {T3}, {sW}, 12
        s_add_u32 {T2}, {T2}, {T3}
        s_add_u32 {T2}, {T2}, {sGRP}
        """)
        self.poll(f"buffer_load_dword v16, v1, {sWS}, {T0} offen sc1", ["v16"])
        self.stamp("oflag")

        def tile_dma(ldsb, goff):
            for tt in range(2):
                a(f"s_add_u32 m0, {T3}, {ldsb + tt * 32768}")
                a(f"s_add_u32 {T0}, {T2}, {goff + tt * 32768}")
                for k in range(4):
                    h = self.dma(vL16, sWS, T0, off=k * 1024, sc="sc1")
            return h

        h = tile_dma(L_O, G_O)
        a(f"""
        v_lshlrev_b32 v9, 9, v7
        v_lshl_add_u32 v9, v8, 4, v9
        v_add_u32 v10, {L_X1}, v9
        """)
        a.waith(h)
        a("s_barrier")
        self.stamp("oland")
        a(f"s_cmp_lt_u32 {sW}, 4")
        a("s_cbranch_scc1 L_noC")
        s0 = a.snap()
        BUF = lambda s, T: 16 + ((s % 3) * 4 + T) * 4
        ACC = lambda T: 64 + 4 * T

        def aread(addr, s):
            for T in range(4):
                a(f"ds_read_b128 {vr(BUF(s, T))}, {addr} offset:{(T >> 1) * 32768 + s * 2048 + (T & 1) * 256}")

        aread("v9", 0)
        aread("v9", 1)
        for s in range(16):
            if s + 2 < 16:
                aread("v9", s + 2)
            for T in range(4):
                c = "0" if s == 0 else vr(ACC(T))
                a(f"v_mfma_f32_16x16x32_bf16 {vr(ACC(T))}, {vr(128 + 4 * s)}, {vr(BUF(s, T))}, {c}")
            if s == 4:
                a("""
                v_and_b32 v101, 0xffff0000, v100
                v_lshlrev_b32 v100, 16, v100
                v_and_b32 v103, 0xffff0000, v102
                v_lshlrev_b32 v102, 16, v102
                """)
            if s in (6, 8):
                for i in range(4):
                    k = (s - 6) * 2 + i
                    a(f"v_lshlrev_b32 v{128 + 2 * k}, 16, v{92 + k}")
                    a(f"v_and_b32 v{129 + 2 * k}, 0xffff0000, v{92 + k}")
            if s == 10:
                a(f"""
                s_lshl_b32 {T4}, {sCG}, 2
                s_add_u32 {T4}, {T4}, {sW}
                s_sub_u32 {T4}, {T4}, 4
                s_lshl_b32 {T0}, {T4}, 10
                s_lshl_b32 {T1}, {sTQ}, 16
                s_add_u32 {T0}, {T0}, {T1}
                s_add_u32 {T0}, {T0}, {sGRP}
                s_add_u32 {T0}, {T0}, {G_X1}
                s_add_u32 {T5}, {T0}, 32768
                s_lshl_b32 {T4}, {T4}, 2
                s_lshl_b32 {T1}, {sTQ}, 8
                s_add_u32 {T1}, {T1}, {T4}
                s_add_u32 {T1}, {T1}, {sGRP}
                s_add_u32 {T1}, {T1}, {G_X1FLAG}
                v_mov_b32 v1, {sTAG}
                """)
        for T in range(4):
            for i in range(2):
                a(f"v_pk_fma_f32 {vr(ACC(T) + 2 * i, 2)}, {vr(ACC(T) + 2 * i, 2)}, {vr(100 + 2 * i, 2)}, {vr(128 + 4 * T + 2 * i, 2)}")
        for T in range(4):
            for i in range(2):
                a(f"v_cvt_pk_bf16_f32 v{16 + 2 * T + i}, v{ACC(T) + 2 * i}, v{ACC(T) + 2 * i + 1}")
        a("""
        v_permlane16_swap_b32 v16, v18
        v_permlane16_swap_b32 v17, v19
        v_permlane16_swap_b32 v20, v22
        v_permlane16_swap_b32 v21, v23
        """)

        def st(sc):
            a(f"buffer_store_dwordx4 v[16:19], {vL16}, {sWS}, {T0} offen {sc}")
            a(f"buffer_store_dwordx4 v[20:23], {vL16}, {sWS}, {T5} offen {sc}")
            a.wait(vm=0)
            self.flag_store("v1", vL16, T1, sc)
        self.pub(st)
        a.merge(s0)
        a.L("L_noC")
        self.stamp("cdone")
        a(f"""
        v_and_b32 v1, 3, v0
        v_lshlrev_b32 v1, 2, v1
        s_lshl_b32 {T0}, {sTQ}, 8
        s_lshl_b32 {T1}, {sW}, 4
        s_add_u32 {T0}, {T0}, {T1}
        s_add_u32 {T0}, {T0}, {sGRP}
        s_add_u32 {T0}, {T0}, {G_X1FLAG}
        """)
        self.poll(f"buffer_load_dword v24, v1, {sWS}, {T0} offen sc1", ["v24"])
        h = tile_dma(L_X1, G_X1)
        a(f"""
        s_lshr_b32 {T0}, {sW}, 2
        s_lshl_b32 {T0}, {T0}, 15
        s_and_b32 {T1}, {sW}, 3
        s_lshl_b32 {T1}, {T1}, 7
        s_add_u32 {T0}, {T0}, {T1}
        s_add_u32 {T0}, {T0}, {L_X1}
        v_and_b32 v1, 7, v0
        v_lshrrev_b32 v2, 3, v0
        v_lshlrev_b32 v11, 4, v1
        v_lshl_add_u32 v11, v2, 9, v11
        v_add_u32 v11, {T0}, v11              ; stats
        v_lshlrev_b32 v3, 4, v2
        v_lshl_add_u32 v3, v1, 9, v3
        s_lshl_b32 {T1}, {sCG}, 12
        s_add_u32 {T0}, {T0}, {T1}
        v_add_u32 v3, {T0}, v3
        s_mul_i32 {T0}, {sW}, 11
        s_cmp_eq_u32 {sW}, 7
        s_cselect_b32 {T4}, 76, {T0}
        s_mul_i32 {sW2B}, {sCG}, {86 * 2048}
        s_lshl_b32 {T0}, {T4}, 11
        s_add_u32 {sW2B}, {sW2B}, {T0}
        s_add_u32 {sW2B}, {sW2B}, {WS_W2F}
        """)
        a.waith(h)
        a("s_barrier")
        self.stamp("x1land")
        for i in range(8):
            a(f"ds_read_b128 {vr(16 + 4 * i)}, v11 offset:{i * 4096}")
        a("ds_read_b128 v[12:15], v3")
        a("""
        v_mov_b32 v1, 0x3f803f80
        v_mov_b32 v96, 0
        v_mov_b32 v97, 0
        v_mov_b32 v98, 0
        v_mov_b32 v99, 0
        """)
        for i in range(32):
            a(f"v_dot2_f32_bf16 v{96 + 2 * (i & 1)}, v{16 + i}, v1, v{96 + 2 * (i & 1)}")
            a(f"v_dot2_f32_bf16 v{97 + 2 * (i & 1)}, v{16 + i}, v{16 + i}, v{97 + 2 * (i & 1)}")
        BUF = lambda s, T: 16 + ((s % 3) * 4 + T) * 4
        aread("v10", 0)
        aread("v10", 1)
        a(f"""
        v_pk_add_f32 v[96:97], v[96:97], v[98:99]
        s_lshl_b32 {T0}, {sW}, 6
        s_add_u32 {T0}, {T0}, {L_ST2}
        v_add_f32_dpp v96, v96, v96 row_ror:8 row_mask:0xf bank_mask:0xf
        v_add_f32_dpp v97, v97, v97 row_ror:8 row_mask:0xf bank_mask:0xf
        v_mov_b32 v98, v96
        v_mov_b32 v99, v97
        v_permlane16_swap_b32 v96, v98
        v_permlane16_swap_b32 v97, v99
        v_pk_add_f32 v[96:97], v[96:97], v[98:99]
        v_mov_b32 v98, v96
        v_mov_b32 v99, v97
        v_permlane32_swap_b32 v96, v98
        v_permlane32_swap_b32 v97, v99
        v_pk_add_f32 v[96:97], v[96:97], v[98:99]
        v_mul_f32 v96, {f2u(1.0 / 512)}, v96
        v_mul_f32 v98, v96, v96
        v_mul_f32 v97, {f2u(1.0 / 512)}, v97
        v_sub_f32 v98, v97, v98
        """)
        a(f"""
        v_max_f32 v98, 0, v98
        v_add_f32 v98, {f2u(1e-5)}, v98
        v_rsq_f32 v98, v98
        v_and_b32 v1, 7, v0
        v_lshl_add_u32 v1, v1, 3, {T0}
        v_mul_f32 v99, v96, v98
        v_sub_f32 v99, 0, v99
        ds_write_b64 v1, v[98:99]
        """)
        ACC2 = lambda i, T: 64 + 16 * i + 4 * T

        def w2load(ks, f):
            rb = 128 + 64 * f + 4 * ks
            o = (ks & 1) * 2048 + f * 1024
            a(f"buffer_load_dwordx4 {vr(rb)}, {vL16}, {sWS}, {sW2B} offen offset:{o} sc1")

        def dloop(sets):
            for s in range(16):
                if s + 2 < 16:
                    aread("v10", s + 2)
                for i in sets:
                    for T in range(4):
                        c = "0" if s == 0 else vr(ACC2(i, T))
                        a(f"v_mfma_f32_16x16x32_bf16 {vr(ACC2(i, T))}, {vr(128 + 64 * i + 4 * s)}, {vr(BUF(s, T))}, {c}")
                if s < 11:
                    w2load(s, 0)
                    w2load(s, 1)
                    if s & 1:
                        a(f"s_add_u32 {sW2B}, {sW2B}, 4096")

        def depi(i, ub):
            for T in range(4):
                for k in range(2):
                    t = vr(48 + 2 * k, 2)
                    a(f"v_pk_fma_f32 {t}, {vr(40 + 2 * T, 2)}, {vr(ub + 2 * k, 2)}, {vr(ub + 4 + 2 * k, 2)} op_sel:[1,0,0] op_sel_hi:[1,1,1]")
                for k in range(2):
                    t = vr(48 + 2 * k, 2)
                    acc = vr(ACC2(i, T) + 2 * k, 2)
                    a(f"v_pk_fma_f32 {acc}, {vr(40 + 2 * T, 2)}, {acc}, {t} op_sel_hi:[0,1,1]")
                for k in range(2):
                    a(f"v_cvt_pk_bf16_f32 v{16 + 8 * i + 2 * T + k}, v{ACC2(i, T) + 2 * k}, v{ACC2(i, T) + 2 * k + 1}")
                for k in range(2):
                    r = 16 + 8 * i + 2 * T + k
                    a(f"v_pk_max_i16 v{r}, v{r}, 0")
            b = 16 + 8 * i
            a(f"""
            v_permlane16_swap_b32 v{b}, v{b + 2}
            v_permlane16_swap_b32 v{b + 1}, v{b + 3}
            v_permlane16_swap_b32 v{b + 4}, v{b + 6}
            v_permlane16_swap_b32 v{b + 5}, v{b + 7}
            """)

        def dtail():
            a.wait(lg=0)
            a("s_barrier")
            a(f"v_lshlrev_b32 v1, 3, v8")
            a(f"v_add_u32 v1, {L_ST2}, v1")
            for T in range(4):
                a(f"ds_read_b64 {vr(40 + 2 * T, 2)}, v1 offset:{T * 128}")
            a(f"""
            s_mul_i32 {T0}, {sTQ}, {2 * 86 * 1024}
            s_add_u32 {T0}, {T0}, {sGRP}
            s_add_u32 {T2}, {T0}, {G_HID}
            s_lshl_b32 {T0}, {sU0}, 10
            s_add_u32 {T0}, {T0}, {T2}
            s_add_u32 {T5}, {T0}, {86 * 1024}
            s_lshl_b32 {T1}, {sTQ}, 3
            s_add_u32 {T1}, {T1}, {sCG}
            s_lshl_b32 {T1}, {T1}, 3
            s_add_u32 {T1}, {T1}, {sW}
            s_lshl_b32 {T1}, {T1}, 2
            s_add_u32 {T1}, {T1}, {sGRP}
            s_add_u32 {T1}, {T1}, {G_HFLAG}
            v_mov_b32 v2, {sTAG}
            """)

        a(f"s_cmp_ge_u32 {sW}, 4")
        a("s_cbranch_scc1 L_dB")
        s0 = a.snap()
        dloop((0, 1))
        dtail()
        depi(0, 104)
        depi(1, 112)

        def stA(sc):
            a(f"buffer_store_dwordx4 v[16:19], {vL16}, {sWS}, {T0} offen {sc}")
            a(f"buffer_store_dwordx4 v[20:23], {vL16}, {sWS}, {T5} offen {sc}")
            a(f"buffer_store_dwordx4 v[24:27], {vL16}, {sWS}, {T0} offen offset:1024 {sc}")
            a(f"buffer_store_dwordx4 v[28:31], {vL16}, {sWS}, {T5} offen offset:1024 {sc}")
            a.wait(vm=0)
            self.flag_store("v2", vL16, T1, sc)
        self.pub(stA)
        a("s_branch L_dDone")
        s1 = a.snap()
        a.restore(s0)
        a.L("L_dB")
        dloop((1,))
        dtail()
        depi(1, 112)
        a(f"""
        s_cmp_lt_u32 {sCG}, 6
        s_cselect_b32 {T3}, 7, 6
        """)

        def stB(sc):
            lab = a.newlabel("L_nost")
            a(f"s_cmp_ge_u32 {sW}, {T3}")
            a(f"s_cbranch_scc1 {lab}")
            a(f"buffer_store_dwordx4 v[24:27], {vL16}, {sWS}, {T0} offen {sc}")
            a(f"buffer_store_dwordx4 v[28:31], {vL16}, {sWS}, {T5} offen {sc}")
            a.L(lab)
            a.wait(vm=0)
            self.flag_store("v2", vL16, T1, sc)
        self.pub(stB)
        a.merge(s1)
        a.L("L_dDone")
        self.stamp("ddone")
        a(f"""
        v_and_b32 v1, 7, v0
        v_lshlrev_b32 v1, 2, v1
        s_lshl_b32 {T0}, {sTQ}, 3
        s_add_u32 {T0}, {T0}, {sW}
        s_lshl_b32 {T0}, {T0}, 5
        s_add_u32 {T0}, {T0}, {sGRP}
        s_add_u32 {T0}, {T0}, {G_HFLAG}
        s_lshl_b32 {T4}, {T4}, 10
        s_add_u32 {T2}, {T2}, {T4}
        """)
        self.poll(f"buffer_load_dword v32, v1, {sWS}, {T0} offen sc1", ["v32"])
        self.stamp("hflag")
        ring = [80 + 4 * i for i in range(10)] + [172 + 4 * i for i in range(5)] + [236 + 4 * i for i in range(5)]
        HB = lambda tt, ks: ring[(tt * 11 + ks) % 20]

        def hload(n):
            tt, ks = divmod(n, 11)
            if ks % 4 == 0:
                a(f"s_add_u32 {T0}, {T2}, {tt * 86 * 1024 + ks * 1024}")
            o = f" offset:{(ks % 4) * 1024}" if ks % 4 else ""
            a(f"buffer_load_dwordx4 {vr(HB(tt, ks))}, {vL16}, {sWS}, {T0} offen{o} sc1")

        for n in range(20):
            hload(n)
        EA = lambda tt, f: 16 + 32 * tt + 16 * f
        a(f"""
        v_and_b32 v1, 31, v0
        v_mul_u32_u24 v1, {RED_ROW}, v1
        v_lshrrev_b32 v2, 5, v0
        v_lshl_add_u32 v1, v2, 4, v1
        s_mul_i32 {T1}, {sW}, {RED_W}
        v_add_u32 v9, {T1}, v1
        v_lshrrev_b32 v2, 3, v0
        v_and_b32 v3, 7, v0
        v_mul_u32_u24 v1, {RED_ROW}, v2
        v_lshl_add_u32 v1, v3, 5, v1
        s_mul_i32 {T1}, {sW}, {8 * RED_ROW}
        v_add_u32 v10, {T1}, v1
        v_add_u32 v11, {4 * RED_W}, v10
        v_lshlrev_b32 v2, 10, v2
        v_lshl_add_u32 v4, v3, 4, v2
        """)

        def pwrite(tt, n):
            f, q = divmod(n, 4)
            a(f"ds_write_b128 v9, {vr(EA(tt, f) + 4 * q)} offset:{tt * 32 * RED_ROW + f * 128 + q * 32}")

        for tt in range(2):
            for ks in range(11):
                if ks == 10:
                    lab = a.newlabel("L_k10")
                    a(f"s_cmp_ge_u32 {sW}, 6")
                    a(f"s_cbranch_scc1 {lab}")
                    sk = a.snap()
                for f in range(2):
                    c = "0" if ks == 0 else vr(EA(tt, f), 16)
                    a(f"v_mfma_f32_32x32x16_bf16 {vr(EA(tt, f), 16)}, {vr(128 + 64 * f + 4 * ks)}, {vr(HB(tt, ks))}, {c}")
                if ks == 10:
                    a.merge(sk)
                    a.L(lab)
                if tt == 0 and ks < 2:
                    hload(20 + ks)
                if tt == 1 and 2 <= ks < 10:
                    pwrite(0, ks - 2)
        for n in range(8):
            pwrite(1, n)
        for i in range(4):
            a(f"v_and_b32 v{121 + 2 * i}, 0xffff0000, v{120 + 2 * i}")
            a(f"v_lshlrev_b32 v{120 + 2 * i}, 16, v{120 + 2 * i}")
            a(f"v_lshlrev_b32 v{128 + 2 * i}, 16, v{12 + i}")
            a(f"v_and_b32 v{129 + 2 * i}, 0xffff0000, v{12 + i}")
        a(f"""
        s_lshl_b32 {T0}, {sGX}, 18
        s_lshl_b32 {T1}, {sTQ}, 16
        s_add_u32 {T0}, {T0}, {T1}
        s_lshl_b32 {T1}, {sW}, 13
        s_add_u32 {T0}, {T0}, {T1}
        s_lshl_b32 {T1}, {sCG}, 7
        s_add_u32 {T0}, {T0}, {T1}
        """)
        a.wait(lg=0)
        a("s_barrier")
        self.stamp("edone")
        for src in range(8):
            ad = "v10" if src < 4 else "v11"
            a(f"ds_read_b128 {vr(16 + 8 * src)}, {ad} offset:{(src & 3) * RED_W}")
            a(f"ds_read_b128 {vr(20 + 8 * src)}, {ad} offset:{(src & 3) * RED_W + 16}")
        for src in range(1, 8):
            for k in range(4):
                a(f"v_pk_add_f32 {vr(16 + 2 * k, 2)}, {vr(16 + 2 * k, 2)}, {vr(16 + 8 * src + 2 * k, 2)}")
        for k in range(4):
            a(f"v_pk_fma_f32 {vr(16 + 2 * k, 2)}, {vr(16 + 2 * k, 2)}, {vr(120 + 2 * k, 2)}, {vr(128 + 2 * k, 2)}")
        for k in range(4):
            a(f"v_cvt_pk_bf16_f32 v{24 + k}, v{16 + 2 * k}, v{17 + 2 * k}")
        a(f"buffer_store_dwordx4 v[24:27], v4, {sOUT}, {T0} offen")

    def finish(self):
        a = self.a
        a(f"s_or_b32 {T0}, s2, {sW}")
        a(f"s_cmp_lg_u32 {T0}, 0")
        a("s_cbranch_scc1 L_fin")
        a(f"v_mov_b32 v1, {sTAG}")
        self.flag_store("v1", "v6", "0", "sc1")
        a.L("L_fin")
        if self.stamps:
            a.wait(vm=0)
            self.stamp("end")
            a(f"""
            s_lshl_b32 {T0}, s2, 3
            s_add_u32 {T0}, {T0}, {sW}
            s_lshl_b32 {T0}, {T0}, 7
            s_add_u32 {T0}, {T0}, {WS_STAMP}
            """)
            for i in range(16):
                a(f"v_mov_b32 v{16 + i}, s{STAMP0 + i}")
            a("v_mov_b32 v32, s100")
            a("s_mov_b64 exec, 1")
            for i in range(4):
                a(f"buffer_store_dwordx4 {vr(16 + 4 * i)}, v6, {sWS}, {T0} offen offset:{16 * i}")
            a(f"buffer_store_dword v32, v6, {sWS}, {T0} offen offset:64")
            if "ampb" in self.opt:
                a(f"s_cmp_lg_u32 s2, 100")
                a("s_cbranch_scc1 L_end")
                a(f"s_cmp_lg_u32 {sW}, 0")
                a("s_cbranch_scc1 L_end")
                a(f"s_sub_u32 {T0}, s{STAMP0 + self.opt['ampb']}, s{STAMP0 + self.opt['ampa']}")
                a(f"s_mul_i32 {T0}, {T0}, 10")
                a(f"s_min_u32 {T0}, {T0}, 200000")
                a.L("L_amp")
                a("s_memrealtime s[82:83]")
                a.wait(lg=0)
                a(f"s_sub_u32 {T1}, s82, s{STAMP0 + self.nstamp - 1}")
                a(f"s_cmp_lt_u32 {T1}, {T0}")
                a("s_cbranch_scc1 L_amp")
            if self.opt.get("dbg"):
                a(f"s_cmp_lg_u32 s2, {self.opt['dbg'] - 1}")
                a("s_cbranch_scc1 L_end")
                a(f"s_cmp_lg_u32 {sW}, 0")
                a("s_cbranch_scc1 L_end")
                self.srd(sC, 22, 256)
                a("s_memrealtime s[82:83]")
                for i in range(1, 16):
                    a(f"v_subrev_u32 v{16 + i}, s{STAMP0}, v{16 + i}")
                a.wait(lg=0)
                a("s_sub_u32 s82, s82, s100")
                a("v_mov_b32 v16, s82")
                for i in range(4):
                    a(f"buffer_store_dwordx4 {vr(16 + 4 * i)}, v6, {sC}, 0 offen offset:{16 * i}")
        a.L("L_end")
        a("s_endpgm")
        if hasattr(self, "slow_state"):
            self.slow_path()
        n = a.fix_hazards()
        return n


HEADER = """; Fused adaLN-conditioned block (LN+modulate -> MHA -> gated residual -> LN+modulate -> ReLU FFN -> gated residual)
; Kernarg: 0 A_x | 8 A_wqkv | 16 A_wo | 24 B_x | 32 B_w1 | 40 B_w2 | 48 c | 56 w_mod | 64 out | 72 debug | 80 ws
; @launch grid=(256,1,1) block=(512,1,1) lds=163840
.amdgcn_target "amdgcn-amd-amdhsa--gfx950"
.text
.globl {name}_kernel
.p2align 8
.type {name}_kernel,@function
{name}_kernel:
"""
FOOTER = """
    s_endpgm
L_code_end:
.p2align 8
.fill {pad}, 4, 0xbf810000
.section .rodata,"a"
.p2align 6
.amdhsa_kernel {name}_kernel
  .amdhsa_next_free_vgpr 256
  .amdhsa_next_free_sgpr 102
  .amdhsa_accum_offset 256
  .amdhsa_group_segment_fixed_size 0
  .amdhsa_kernarg_size 88
  .amdhsa_user_sgpr_count 2
  .amdhsa_user_sgpr_kernarg_segment_ptr 1
  .amdhsa_system_sgpr_workgroup_id_x 1
.end_amdhsa_kernel
"""


def generate(**kw):
    g = Gen(**kw)
    n = g.build()
    txt = HEADER.format(name=NAME) + g.a.text() + FOOTER.format(name=NAME, pad=64)
    return txt, g


if __name__ == "__main__":
    import argparse
    ap = argparse.ArgumentParser()
    ap.add_argument("-o", default=f"cdna_kernels/{NAME}.s")
    ap.add_argument("--stamps", action="store_true")
    ap.add_argument("--stop", default=None)
    ap.add_argument("--safe", action="store_true")
    ap.add_argument("--slow", action="store_true")
    ap.add_argument("--opt", default="")
    args = ap.parse_args()
    kw = {}
    for o in filter(None, args.opt.split(",")):
        k, v = o.split("=")
        kw[k] = int(v)
    txt, g = generate(stamps=args.stamps, stop=args.stop, force_safe=args.safe, force_slow=args.slow, **kw)
    open(args.o, "w").write(txt)
    print("wrote", args.o, len(txt), "bytes;", len(g.a.ins), "lines; stamps:", g.stamp_names)
```

```python
import sys, os, math, struct
sys.path.insert(0, os.path.dirname(os.path.abspath(__file__)))
from asmlib import Asm

NAME = "adaLN_cond__softmax_full_mha__dense_activation_relu__prompt"

WS_EPOCH = 0
WS_MODG = 0x1000
WS_STATG = 0x4000
WS_PFLAG = 0x18000
WS_MODP = 0xC000
WS_KVFLAG = 0x10000
WS_WOF = 0x20000
WS_W1F = 0xA0000
WS_W2F = 0x200000
WS_KV = 0x400000
WS_GRP = 0x800000
G_O, G_X1, G_HID = 0, 0x40000, 0x80000
G_ST = 0x12C000
G_OFLAG, G_X1FLAG, G_HFLAG = 0x13C000, 0x13C400, 0x13C800
WS_STAMP = 0x1800000
WS_SIZE = 0x1900000

KVS = 2064
L_WM = 0x0
L_X = 0x8000
L_W = 0x18000
L_PF = 0x20400
L_SC = 0x24400
L_P = 0x24800
L_G = 0x24C00
L_UBP = 0x26C00
L_ST2 = 0x27C00
L_GS = L_G
L_SP = L_G + 2048
L_SF = L_G + 6144
L_RES = L_PF
L_WM2 = 48 * KVS
L_O = 0x0
L_X1 = 0x10000
RED_ROW = 272
RED_W = 64 * RED_ROW
LDS_SIZE = 163840

sW = "s3"
sX, sWQ, sWM, sC, sWS, sOUT, sPF, sCODE = ("s[28:31]", "s[32:35]", "s[36:39]", "s[40:43]", "s[44:47]",
                                           "s[48:51]", "s[52:55]", "s[56:59]")
sGX, sJ, sTAG, sTQ, sCG, sGRP, sLOC, sSPIN = ("s60", "s61", "s62", "s63", "s64", "s65", "s66", "s67")
sKVB, sB0, sB1, sTASK, sPFD, sU0, sU1, sW2B = ("s68", "s69", "s70", "s71", "s72", "s73", "s74", "s75")
T0, T1, T2, T3, T4, T5 = ("s76", "s77", "s78", "s79", "s80", "s81")
sKS, sM2 = "s26", "s27"
STAMP0 = 84

QSCALE = 0.25 * math.log2(math.e)
LOG2E = math.log2(math.e)


def f2u(x):
    return "0x%08x" % struct.unpack("<I", struct.pack("<f", x))[0]


def vr(b, n=4):
    return f"v[{b}:{b + n - 1}]"


class Gen:
    def __init__(self, stamps=False, stop=None, force_safe=False, force_slow=False, sgrp=0, **opt):
        self.sgrp = sgrp
        self.opt = opt
        self.a = Asm()
        self.stamps = stamps
        self.stop = stop
        self.force_safe = force_safe
        self.force_slow = force_slow
        self.nstamp = 0
        self.stamp_names = []

    def stamp(self, name, grp=0):
        if not self.stamps:
            return
        if name not in ("entry", "end") and grp != self.sgrp and not (isinstance(grp, tuple) and self.sgrp in grp):
            return
        a = self.a
        assert self.nstamp < 16
        a("s_memtime s[82:83]" if self.opt.get("cyc") else "s_memrealtime s[82:83]")
        a.wait(lg=0)
        a(f"s_mov_b32 s{STAMP0 + self.nstamp}, s82")
        self.nstamp += 1
        self.stamp_names.append(name)

    def srd(self, dst, lo, size):
        d = int(dst[2:].split(":")[0])
        self.a(f"""
        s_mov_b32 s{d}, s{lo}
        s_mov_b32 s{d + 1}, s{lo + 1}
        s_mov_b32 s{d + 2}, {size}
        s_mov_b32 s{d + 3}, 0x20000""")

    def dma(self, vaddr, srd, soff, off=0, sc=""):
        o = f" offset:{off}" if off else ""
        return self.a(f"buffer_load_dwordx4 {vaddr}, {srd}, {soff} offen{o} {sc} lds")

    def tagcmp(self, cmps):
        a = self.a
        a(f"v_cmp_ne_u32 vcc, {sTAG}, {cmps[0]}")
        for c in cmps[1:]:
            if isinstance(c, tuple):
                a(f"v_xor_b32 v1, {sTAG}, {c[1]}")
                a(f"v_cmp_lt_u32 s[82:83], 15, v1")
            else:
                a(f"v_cmp_ne_u32 s[82:83], {sTAG}, {c}")
            a("s_or_b64 vcc, vcc, s[82:83]")

    def poll(self, load, cmps):
        a = self.a
        lab, done = a.newlabel("L_poll"), a.newlabel("L_polld")
        a(f"s_mov_b32 {sSPIN}, 0x40000")
        a.L(lab)
        a(load)
        a(f"s_sub_u32 {sSPIN}, {sSPIN}, 1")
        a(f"s_cbranch_scc1 {done}")
        a.wait(vm=0)
        self.tagcmp(cmps)
        a(f"s_cbranch_vccnz {lab}")
        a.L(done)
        a.wait(vm=0)

    def pub(self, fn):
        a = self.a
        ls, ld = a.newlabel("L_safe"), a.newlabel("L_pubd")
        a(f"s_cmp_eq_u32 {sLOC}, 0")
        a(f"s_cbranch_scc1 {ls}")
        s0 = a.snap()
        fn("")
        a(f"s_branch {ld}")
        s1 = a.snap()
        a.restore(s0)
        a.L(ls)
        fn("sc1")
        a.merge(s1)
        a.L(ld)

    def flag_store(self, vtmp, voff, soff, sc):
        a = self.a
        a(f"s_mov_b64 exec, 1")
        a(f"buffer_store_dword {vtmp}, {voff}, {sWS}, {soff} offen {sc}")
        a(f"s_mov_b64 exec, -1")

    def check(self, h, load, cmps, mode="eq"):
        a = self.a
        ok = a.newlabel("L_ok")
        a.waith(h)
        self.tagcmp(cmps)
        a(f"s_cbranch_vccz {ok}")
        s0 = a.snap()
        self.poll(load, cmps)
        a.merge(s0)
        a.L(ok)

    def build(self):
        a = self.a
        o = self.opt
        NR = o.get("nr", 4)
        QD = o.get("qd", 4)
        ntm = "nt" if o.get("ntm", 1) else ""
        a("s_cmp_ge_u32 s2, 256")
        a("s_cbranch_scc1 L_end")
        if self.stamps:
            a("s_memrealtime s[100:101]")
            self.stamp("entry")
        a("""
        s_load_dwordx16 s[4:19], s[0:1], 0
        s_load_dwordx4 s[20:23], s[0:1], 64
        s_load_dwordx2 s[24:25], s[0:1], 80
        s_getpc_b64 s[56:57]
        L_pc:
        s_setprio 3
        v_lshrrev_b32 v1, 6, v0
        v_and_b32 v0, 63, v0
        v_readfirstlane_b32 s3, v1
        """)
        vL16 = "v6"
        a(f"""
        s_and_b32 {sGX}, s2, 7
        s_lshr_b32 {sJ}, s2, 3
        s_and_b32 s57, s57, 0xffff
        s_mov_b32 s58, L_code_end-L_pc
        s_mov_b32 s59, 0x20000
        v_lshlrev_b32 v6, 4, v0
        v_lshrrev_b32 v7, 4, v0             ; g4
        v_and_b32 v8, 15, v0                ; n
        v_lshrrev_b32 v1, 3, v0
        v_and_b32 v2, 7, v0
        v_mul_u32_u24 v1, 6144, v1
        v_lshl_add_u32 v9, v2, 4, v1
        v_lshrrev_b32 v1, 1, v0
        v_and_b32 v2, 1, v0
        v_mul_u32_u24 v1, 3072, v1
        v_lshl_add_u32 v10, v2, 4, v1
        v_lshlrev_b32 v13, 1, v0            ; c voffset
        s_and_b32 {T0}, {sJ}, 3
        s_lshl_b32 {sTASK}, {sGX}, 3
        s_lshr_b32 {T1}, {sJ}, 2
        s_add_u32 {sTASK}, {sTASK}, {T1}
        s_cmp_eq_u32 {T0}, 0
        s_cselect_b32 {sTASK}, {sTASK}, 0xff
        s_lshl_b32 {T0}, {T0}, 2
        s_lshr_b32 {sU0}, 0x4310, {T0}
        s_and_b32 {sU0}, {sU0}, 7
        s_mul_i32 {sB0}, {sW}, {64 * 3072}
        s_lshl_b32 {T1}, {sJ}, 5
        s_add_u32 {sB0}, {sB0}, {T1}
        s_mul_i32 {sB1}, {sW}, 6144
        s_add_u32 {sB1}, {sB1}, {L_W}
        s_lshl_b32 {T4}, {sGX}, 18
        s_lshl_b32 {T1}, {sJ}, 13
        s_add_u32 {T2}, {T4}, {T1}
        s_lshl_b32 {T1}, {sW}, 10
        s_add_u32 {T2}, {T2}, {T1}
        s_mov_b32 s38, {512 * 6144}
        s_mov_b32 s39, 0x20000
        s_mov_b32 s42, 1024
        s_mov_b32 s43, 0x20000
        s_mov_b32 s30, {2048 * 1024}
        s_mov_b32 s31, 0x20000
        s_mov_b32 s34, {512 * 3072}
        s_mov_b32 s35, 0x20000
        s_and_b32 {T0}, {sTASK}, 1
        s_lshl_b32 {T0}, {T0}, 3
        s_add_u32 {T3}, {T0}, {sW}
        s_mul_i32 {T0}, {T3}, {32 * 6144}
        s_lshr_b32 {T1}, {sTASK}, 1
        s_lshl_b32 {T1}, {T1}, 7
        s_add_u32 {T0}, {T0}, {T1}
        s_lshl_b32 {T1}, {sW}, 12
        s_lshl_b32 {T3}, {T3}, 6
        """)
        vG4, vN = "v7", "v8"
        a.wait(lg=0)
        a("""
        s_mov_b64 s[36:37], s[18:19]
        s_mov_b64 s[40:41], s[16:17]
        s_mov_b64 s[28:29], s[4:5]
        s_mov_b64 s[32:33], s[6:7]
        """)
        hE = a(f"s_load_dword {sTAG}, s[24:25], 0")
        a(f"s_cmp_ge_u32 {sTASK}, 32")
        a("s_cbranch_scc1 L_noprod1")
        s0 = a.snap()
        a(f"s_add_u32 m0, {T1}, {L_WM}")
        hC = a(f"buffer_load_ushort v16, v13, {sC}, {T3} offen")
        for i in range(4):
            hWM = self.dma("v9", sWM, T0, sc=ntm)
            if i < 3:
                a(f"s_add_u32 m0, {T1}, {L_WM + (i + 1) * 1024}")
                a(f"s_add_u32 {T0}, {T0}, {8 * 6144}")
        a.merge(s0)
        a.L("L_noprod1")
        a(f"buffer_load_dwordx4 v[20:23], {vL16}, {sX}, {T2} offen {'nt' if o.get('ntx', 1) else ''}")

        def w_issue():
            a(f"""
            s_lshl_b32 {T0}, {sU0}, 10
            s_add_u32 m0, {sB1}, {T0}
            s_add_u32 {T0}, {T0}, {sB0}
            s_add_u32 {T1}, {T0}, {32 * 3072 - 3072}
            s_cmp_ge_u32 {sU0}, 3
            s_cselect_b32 {T0}, {T1}, {T0}
            """)
            h = self.dma("v10", sWQ, T0)
            a(f"""
            s_add_u32 {sU0}, {sU0}, 1
            s_cmp_eq_u32 {sU0}, 6
            s_cselect_b32 {sU0}, 0, {sU0}
            """)
            return h

        a("s_setprio 2")
        w_issue()
        a(f"s_cmp_lg_u32 {sW}, 7")
        a("s_cbranch_scc1 L_nopf")
        s0 = a.snap()
        a(f"""
        v_lshlrev_b32 v1, 7, v8
        s_lshl_b32 {T1}, {sJ}, 11
        buffer_load_dword v19, v1, {sCODE}, {T1} offen
        """)
        a.merge(s0)
        a.L("L_nopf")
        self.srd(sWS, 24, WS_SIZE)
        a(f"s_cmp_lt_u32 {sTASK}, 32")
        a("s_cbranch_scc1 L_prod2")
        sP = a.snap()
        a("s_setprio 1")
        for i in range(3):
            w_issue()
        a.waith(hE)
        a(f"s_mul_i32 {sTAG}, {sTAG}, 0x41c64e6d")
        a(f"s_add_u32 {sTAG}, {sTAG}, 0x3c6ef35f")
        self.ln1_stats()
        a("s_branch L_prod_done")
        sN = a.snap()
        a.restore(sP)
        a.L("L_prod2")
        a(f"""
        v_lshrrev_b32 v2, 5, v0             ; h
        v_bfe_u32 v3, v0, 2, 2
        v_lshl_add_u32 v3, v2, 3, v3
        v_lshlrev_b32 v3, 7, v3
        v_and_b32 v4, 1, v7
        v_lshl_add_u32 v3, v4, 5, v3
        v_and_b32 v4, 3, v0
        v_lshl_add_u32 v3, v4, 3, v3
        s_lshl_b32 {T0}, {sW}, 12
        v_add_u32 v3, {T0}, v3
        s_lshl_b32 {T0}, {sW}, 7
        s_add_u32 {T0}, {T0}, {L_SC}
        v_add_u32 v1, {T0}, v13
        v_lshl_add_u32 v2, v2, 4, {T0}
        s_lshl_b32 {T0}, {sW}, 2
        s_add_u32 {T0}, {T0}, {L_P}
        v_lshl_add_u32 v4, v0, 5, {T0}
        """)
        a.waith(hE)
        a(f"""
        s_mul_i32 {sTAG}, {sTAG}, 0x41c64e6d
        s_add_u32 {sTAG}, {sTAG}, 0x3c6ef35f
        v_lshlrev_b32 v16, 16, v16
        v_mul_f32 v17, {f2u(-LOG2E)}, v16
        v_exp_f32 v17, v17
        v_add_f32 v17, 1.0, v17
        v_rcp_f32 v17, v17
        v_mul_f32 v16, v16, v17
        v_cvt_pk_bf16_f32 v16, v16, v16
        ds_write_b16 v1, v16
        ds_read_b128 v[24:27], v2
        ds_read_b128 v[28:31], v2 offset:32
        """)
        a.waith(hWM)
        for i in range(2):
            for f in range(2):
                r = 32 + (i * 2 + f) * 4
                a(f"ds_read_b64_tr_b16 {vr(r, 2)}, v3 offset:{L_WM + 2048 * i + 64 * f}")
                a(f"ds_read_b64_tr_b16 {vr(r + 2, 2)}, v3 offset:{L_WM + 2048 * i + 64 * f + 512}")
        for i in range(2):
            for f in range(2):
                c = "0" if i == 0 else vr(48 + 16 * f, 16)
                a(f"v_mfma_f32_32x32x16_bf16 {vr(48 + 16 * f, 16)}, {vr(24 + 4 * i)}, {vr(32 + (i * 2 + f) * 4)}, {c}")
        a(f"""
        v_lshlrev_b32 v1, 5, v0
        v_add_u32 v1, {L_P}, v1
        s_lshl_b32 {T0}, {sTASK}, 9
        s_add_u32 {T0}, {T0}, {WS_MODP}
        v_mov_b32 v33, {sTAG}
        v_lshlrev_b32 v2, 3, v0
        s_mov_b32 vcc_lo, 0
        s_mov_b32 vcc_hi, -1
        v_cndmask_b32 v48, v48, v64, vcc
        ds_write_b32 v4, v48
        """)
        a.wait(lg=0)
        a("s_barrier")
        a(f"s_cmp_lg_u32 {sW}, 0")
        a("s_cbranch_scc1 L_nofin")
        s1 = a.snap()
        a(f"""
        ds_read_b128 v[24:27], v1
        ds_read_b128 v[28:31], v1 offset:16
        v_pk_add_f32 v[24:25], v[24:25], v[26:27]
        v_pk_add_f32 v[28:29], v[28:29], v[30:31]
        v_pk_add_f32 v[24:25], v[24:25], v[28:29]
        v_add_f32 v32, v24, v25
        buffer_store_dwordx2 v[32:33], v2, {sWS}, {T0} offen sc1
        """)
        a.merge(s1)
        a.L("L_nofin")
        self.stamp("modpub", 3)
        self.ln1_stats()
        a("s_setprio 1")
        for i in range(3):
            w_issue()
        a.merge(sN)
        a.L("L_prod_done")
        self.stamp("stats", 3)
        XF = lambda T, s: 128 + (s * 2 + T) * 4
        a(f"""
        v_and_b32 v1, 31, v0
        v_lshrrev_b32 v2, 5, v0
        v_xor_b32 v2, 1, v2
        v_lshl_add_u32 v1, v2, 8, v1
        v_lshlrev_b32 v13, 3, v1
        v_and_b32 v4, 0x1f0, v6
        v_lshl_add_u32 v4, v2, 13, v4
        v_cvt_f32_u32 v36, v2
        s_lshl_b32 {T3}, {sW}, 10
        s_add_u32 {T3}, {T3}, {WS_MODP}
        v_lshrrev_b32 v1, 3, v0
        v_and_b32 v2, 7, v0
        v_xor_b32 v2, v2, v7
        v_lshlrev_b32 v1, 10, v1
        v_lshl_add_u32 v11, v2, 4, v1
        v_xor_b32 v12, 64, v11              ; (rh=1)
        """)
        w_issue()
        modld = f"""buffer_load_dwordx4 v[24:27], v4, {sWS}, {T3} offen sc1
        buffer_load_dwordx4 v[28:31], v4, {sWS}, {T3} offen offset:512 sc1"""
        hM = a(modld)
        hW = w_issue()
        a(f"""
        s_setprio 0
        s_lshl_b32 {T1}, {sW}, 15
        s_add_u32 {T4}, {T4}, {T1}
        s_lshl_b32 {T5}, {sW}, 13
        s_add_u32 {T5}, {T5}, {L_X}
        """)
        hx, hr = {}, {}

        def x_issue(q):
            if q >= 16:
                return
            kk, T = q >> 1, q & 1
            if q - NR in hr:
                a.waith(hr[q - NR])
            for rh in range(2):
                a(f"s_add_u32 m0, {T5}, {(q % NR) * 2048 + rh * 1024}")
                a(f"s_add_u32 {T1}, {T4}, {(16 * T + 8 * rh) * 1024 + kk * 128}")
                hx[q] = self.dma("v11" if rh == 0 else "v12", sX, T1)

        def x_read(q):
            kk, T = q >> 1, q & 1
            a.waith(hx[q])
            a(f"ds_read_b128 {vr(XF(T, 2 * kk))}, v14 offset:{(q % NR) * 2048}")
            hr[q] = a(f"ds_read_b128 {vr(XF(T, 2 * kk + 1))}, v15 offset:{(q % NR) * 2048}")

        for q in range(2):
            x_issue(q)
        self.srd(sOUT, 20, 2048 * 1024)
        a(f"""
        v_lshrrev_b32 v1, 1, {vN}
        v_xor_b32 v1, v1, {vG4}
        v_lshlrev_b32 v1, 4, v1
        v_lshl_add_u32 v1, {vN}, 7, v1
        v_add_u32 v14, {T5}, v1
        v_xor_b32 v15, 64, v14
        s_lshr_b32 {sTQ}, {sJ}, 3
        s_and_b32 {sCG}, {sJ}, 7
        s_lshl_b32 {sGRP}, {sGX}, 21
        s_add_u32 {sGRP}, {sGRP}, {WS_GRP}
        s_lshl_b32 {T2}, {sW}, 10
        s_add_u32 {T2}, {T2}, {L_G}
        v_lshlrev_b32 v3, 8, {vG4}
        v_lshl_add_u32 v3, {vN}, 3, v3      ; (8*g4 + r)*32 + cc*8
        v_add_u32 v3, {sB1}, v3
        v_add_u32 v5, {sB1}, {vL16}
        """)
        self.check(hM, modld, ["v25", "v27", "v29", "v31"])
        self.stamp("modgot", (0, 3))
        a("""
        v_add_f32 v24, v24, v28
        v_add_f32 v26, v26, v30
        v_cvt_pk_bf16_f32 v16, v24, v26
        v_lshlrev_b32 v24, 16, v16
        v_and_b32 v26, 0xffff0000, v16
        v_add_f32 v24, v24, v36
        v_add_f32 v26, v26, v36
        v_cvt_pk_bf16_f32 v16, v24, v26
        """)
        for q in range(2, NR):
            x_issue(q)
        Wp = lambda sp, p: 104 + (sp * 3 + p) * 4
        self.scale_pre("v16", 18, "v1", "v2", T2, 20)
        a.waith(hW)
        self.stamp("wland", 3)
        for sp in range(2):
            for p in range(3):
                off = (sp * 3 + p) * 1024
                a(f"ds_read_b64_tr_b16 {vr(Wp(sp, p), 2)}, v3 offset:{off}")
                a(f"ds_read_b64_tr_b16 {vr(Wp(sp, p) + 2, 2)}, v3 offset:{off + 128}")
        nsrv = [0]

        def service():
            q = nsrv[0]
            if q > 0:
                x_issue(q - 1 + NR)
            x_read(q)
            nsrv[0] += 1

        PRE = o.get("pre", 3)
        for sp in range(2):
            for p in range(3):
                self.scale_frag(Wp(sp, p), 56 + 8 * (p & 1), 72 + 4 * (sp * 3 + p), 20, sp)
                a(f"ds_write_b128 v5, {vr(72 + 4 * (sp * 3 + p))} offset:{(sp * 3 + p) * 1024}")
                if (sp * 3 + p) in ((1, 3, 5)[:PRE] if PRE <= 3 else range(PRE)):
                    service()
        self.scale_ub(3, Wp, 20, "v1")
        a(f"""
        s_lshl_b32 {T3}, {sGX}, 12
        s_lshl_b32 {T1}, {sW}, 9
        s_add_u32 {T3}, {T3}, {T1}
        s_add_u32 {T3}, {T3}, {WS_STATG}
        v_and_b32 v4, 0x1f0, {vL16}
        v_add_u32 v9, {L_W}, {vL16}
        v_lshlrev_b32 v1, 6, v0
        v_add_u32 v1, {L_UBP}, v1
        """)
        statld = f"buffer_load_dwordx4 v[120:123], v4, {sWS}, {T3} offen sc1"
        hS = a(statld)
        a.wait(lg=0)
        if nsrv[0] > 0:
            x_issue(nsrv[0] - 1 + NR)
        a("s_barrier")
        self.stamp("wready", (0, 3))
        WB = lambda s, p: 56 + ((s & 1) * 3 + p) * 4
        WB2 = lambda s, p: 80 + ((s & 1) * 3 + p) * 4
        wbuf = lambda s, p: (WB if (s >> 1) & 1 == 0 else WB2)(s, p)
        aK, aV, aQ = (16, 20), (24, 28), (32, 36)
        parts = lambda s: (1, 2, 0) if s < 16 - QD else (1, 2)

        def wread(s):
            for p in parts(s):
                a(f"ds_read_b128 {vr(wbuf(s, p))}, v9 offset:{s * 3072 + p * 1024}")

        def mm(T, s, p, wb):
            acc = (aQ, aK, aV)[p][T]
            c = "0" if s == 0 else vr(acc)
            if p == 2:
                a(f"v_mfma_f32_16x16x32_bf16 {vr(acc)}, {vr(XF(T, s))}, {vr(wb)}, {c}")
            else:
                a(f"v_mfma_f32_16x16x32_bf16 {vr(acc)}, {vr(wb)}, {vr(XF(T, s))}, {c}")

        wread(0)
        wread(1)
        for i in range(4):
            a(f"ds_read_b128 {vr(40 + 4 * i)}, v1 offset:{16 * i}")

        def ub1():
            a(f"""
            v_pk_add_f32 v[40:41], v[40:41], v[42:43]
            v_pk_add_f32 v[44:45], v[44:45], v[46:47]
            v_pk_add_f32 v[48:49], v[48:49], v[50:51]
            v_pk_add_f32 v[52:53], v[52:53], v[54:55]
            v_pk_add_f32 v[40:41], v[40:41], v[44:45]
            v_pk_add_f32 v[48:49], v[48:49], v[52:53]
            v_pk_add_f32 v[40:41], v[40:41], v[48:49]
            v_lshl_add_u32 v1, v0, 2, {T2}
            ds_write_b32 v1, v40
            ds_write_b32 v1, v41 offset:256
            """)

        def st1():
            self.check(hS, statld, ["v121", ("x", "v123")])
            a(f"""
            s_getreg_b32 {T0}, hwreg(HW_REG_XCC_ID, 0, 4)
            s_xor_b32 {T0}, {T0}, {sTAG}
            v_cmp_ne_u32 vcc, {T0}, v123
            v_mul_f32 v120, v120, v122
            v_sub_f32 v120, 0, v120
            v_and_b32 v1, 31, v0
            v_lshl_add_u32 v1, v1, 2, {T2}
            s_or_b32 {T0}, vcc_lo, vcc_hi
            ds_write_b32 v1, v122 offset:512
            ds_write_b32 v1, v120 offset:640
            v_mov_b32 v121, {T0}
            s_lshl_b32 {T0}, {sW}, 2
            s_add_u32 {T0}, {T0}, {L_SC}
            v_mov_b32 v1, {T0}
            ds_write_b32 v1, v121
            """)

        def ub2():
            a(f"""
            v_lshl_add_u32 v1, {vG4}, 4, {T2}
            v_lshl_add_u32 v2, {vN}, 2, {T2}
            ds_read_b128 v[40:43], v1 offset:64     ; u_k
            ds_read_b128 v[104:107], v1 offset:320  ; b_k
            ds_read_b128 v[48:51], v1               ; u_q
            ds_read_b128 v[108:111], v1 offset:256  ; b_q
            ds_read2_b32 v[120:121], v2 offset0:128 offset1:160  ; r, mr (T0)
            ds_read2_b32 v[122:123], v2 offset0:144 offset1:176  ; r, mr (T1)
            ds_read2_b32 v[124:125], v2 offset0:32 offset1:96    ; u_v, b_v
            ds_read_b128 v[112:115], v1 offset:640
            ds_read_b128 v[116:119], v1 offset:704
            """)

        def ub3():
            for i in range(4):
                a(f"v_fma_f32 v{44 + i}, v123, v{40 + i}, v{104 + i}")
                a(f"v_fma_f32 v{40 + i}, v121, v{40 + i}, v{104 + i}")

        def ub4():
            for i in range(4):
                a(f"v_fma_f32 v{52 + i}, v123, v{48 + i}, v{108 + i}")
                a(f"v_fma_f32 v{48 + i}, v121, v{48 + i}, v{108 + i}")
            a("""
            ds_read_b128 v[104:107], v1 offset:512  ; r tokens T0
            ds_read_b128 v[108:111], v1 offset:576  ; r tokens T1
            """)

        def ub5():
            for i in range(8):
                a(f"v_fma_f32 v{112 + i}, v{112 + i}, v124, v125")

        def ub6():
            for i in range(8):
                a(f"v_mul_f32 v{48 + i}, {f2u(QSCALE)}, v{48 + i}")
            a(f"v_mul_f32 v121, {f2u(QSCALE)}, v120")
            a(f"v_mul_f32 v123, {f2u(QSCALE)}, v122")

        def adr1():
            a(f"""
            v_bfe_u32 v1, v0, 2, 2
            v_bfe_u32 v2, v0, 4, 1
            v_lshl_add_u32 v1, v1, 1, v2
            v_and_b32 v2, 0x23, v0
            v_lshl_add_u32 v1, v1, 2, v2
            v_lshlrev_b32 v10, 4, v1
            s_lshl_b32 {sKVB}, {sJ}, 17
            s_add_u32 {sKVB}, {sKVB}, {WS_KV}
            s_lshl_b32 {T0}, {sGX}, 3
            s_add_u32 {T0}, {T0}, {sW}
            s_lshl_b32 {T0}, {T0}, 11
            s_add_u32 {T0}, {T0}, {sKVB}
            s_mul_i32 {T3}, {sW}, {KVS}
            v_add_u32 v126, {T3}, v10
            v_add_u32 v127, {T3}, {vL16}
            """)

        def adr2():
            a(f"""
            v_mov_b32 v3, {vL16}
            v_lshrrev_b32 v1, 5, v0
            v_lshlrev_b32 v1, 8, v1
            v_add_u32 v2, 1024, v1
            v_lshl_add_u32 v4, {vN}, 4, v2
            v_mov_b32 v1, 0x40000
            s_mov_b32 vcc_lo, 0xfffe0000
            s_mov_b32 vcc_hi, 0xfffe0000
            v_cndmask_b32 v4, v4, v1, vcc
            v_add_u32 v5, 512, v4
            v_mov_b32 v1, 2048
            s_mov_b32 vcc_lo, 0x00010000
            s_mov_b32 vcc_hi, 0x00010000
            v_cndmask_b32 v4, v4, v1, vcc
            v_cndmask_b32 v5, v5, v1, vcc
            v_mov_b32 v2, 0xdddddddd
            """)

        extra = {1: ub1, 4: st1, 5: ub2, 7: ub3, 8: ub4, 9: ub5, 10: ub6, 11: adr1, 12: adr2}
        for q in range(16):
            kk, T = q >> 1, q & 1
            did = False
            if o.get("sprio", 1) and q in (0, 5, 10, 14):
                a(f"s_setprio {3 - (0, 5, 10, 14).index(q)}")
            if nsrv[0] <= q:
                x_read(q)
                nsrv[0] = q + 1
                x_issue(q + NR)
            if nsrv[0] == q + 1 and q + 1 < 16:
                x_read(q + 1)
                nsrv[0] = q + 2
                did = True
            if kk + 1 < 8:
                wread(2 * (kk + 1) + T)
            for s in (2 * kk, 2 * kk + 1):
                for p in parts(s):
                    mm(T, s, p, wbuf(s, p))
            if did:
                x_issue(q + 1 + NR)
            if q in extra:
                extra[q]()
        self.stamp("gemm", 3)
        WQ = lambda s: 56 + (s % 6) * 4
        for s in range(16 - QD, min(16, 16 - QD + 4)):
            a(f"ds_read_b128 {vr(WQ(s))}, v9 offset:{s * 3072}")
        for T in range(2):
            for i in range(4):
                a(f"v_fma_f32 v{aK[T] + i}, v{120 + 2 * T}, v{aK[T] + i}, v{40 + 4 * T + i}")
        a("""
        v_cvt_pk_bf16_f32 v40, v16, v17
        v_cvt_pk_bf16_f32 v41, v18, v19
        v_cvt_pk_bf16_f32 v42, v20, v21
        v_cvt_pk_bf16_f32 v43, v22, v23
        """)
        for i in range(4):
            a(f"v_pk_fma_f32 {vr(24 + 2 * i, 2)}, {vr(104 + 2 * i, 2)}, {vr(24 + 2 * i, 2)}, {vr(112 + 2 * i, 2)}")
        a("""
        v_permlane16_swap_b32 v40, v42
        v_permlane16_swap_b32 v41, v43
        v_cvt_pk_bf16_f32 v44, v24, v25
        v_cvt_pk_bf16_f32 v45, v26, v27
        v_cvt_pk_bf16_f32 v46, v28, v29
        v_cvt_pk_bf16_f32 v47, v30, v31
        """)
        a(f"buffer_store_dwordx4 v[40:43], v10, {sWS}, {T0} offen sc1")
        self.hKV = a(f"buffer_store_dwordx4 v[44:47], {vL16}, {sWS}, {T0} offen offset:1024 sc1")
        a(f"""
        ds_write_b128 v126, v[40:43]
        ds_write_b128 v127, v[44:47] offset:1024
        v_mov_b32 v124, 0x3f803f80
        v_mov_b32 v125, 0x3f803f80
        v_mov_b32 v126, 0x3f803f80
        v_mov_b32 v127, 0x3f803f80
        v_mov_b32 v1, {T3}
        ds_write_b128 v1, v[124:127] offset:2048
        """)
        self.stamp("kvdone", (0, 3))
        for s in range(16 - QD, 16):
            if s + 4 < 16:
                a(f"ds_read_b128 {vr(WQ(s + 4))}, v9 offset:{(s + 4) * 3072}")
            for T in range(2):
                mm(T, s, 0, WQ(s))
        a(f"""
        s_lshl_b32 {T0}, {sJ}, 3
        s_add_u32 {T0}, {T0}, {sGX}
        s_lshl_b32 {T0}, {T0}, 7
        s_lshl_b32 {T1}, {sW}, 2
        s_add_u32 {T0}, {T0}, {T1}
        s_add_u32 {T5}, {T0}, {WS_KVFLAG}
        v_mov_b32 v91, {sTAG}
        """)
        for T in range(2):
            for i in range(4):
                a(f"v_fma_f32 v{aQ[T] + i}, v{121 + 2 * T}, v{aQ[T] + i}, v{48 + 4 * T + i}")
        a("""
        v_cvt_pk_bf16_f32 v64, v32, v33
        v_cvt_pk_bf16_f32 v65, v34, v35
        v_cvt_pk_bf16_f32 v66, v36, v37
        v_cvt_pk_bf16_f32 v67, v38, v39
        v_permlane16_swap_b32 v64, v66
        v_permlane16_swap_b32 v65, v67
        """)
        a.wait(lg=0)
        a("s_barrier")
        self.stamp("B0", (0, 1, 3))
        if self.stop == "qkv":
            a(f"""
            s_lshl_b32 {T0}, {sW}, 5
            s_add_u32 {T0}, {T0}, {sJ}
            s_lshl_b32 {T0}, {T0}, 10
            s_add_u32 {T0}, {T0}, {sGRP}
            buffer_store_dwordx4 v[64:67], {vL16}, {sWS}, {T0} offen
            """)
            return self.finish()
        self.attention()
        if self.stop == "attn":
            return self.finish()
        self.post()
        return self.finish()

    def mod_addr(self, lds, A):
        a = self.a
        v1, v2, v3, v4 = (f"v{i}" for i in A)
        a(f"""
        v_lshrrev_b32 {v2}, 5, v0
        v_bfe_u32 {v3}, v0, 2, 2
        v_lshl_add_u32 {v3}, {v2}, 3, {v3}
        v_lshlrev_b32 {v3}, 6, {v3}
        v_and_b32 {v4}, 1, v7
        v_lshl_add_u32 {v3}, {v4}, 5, {v3}
        v_and_b32 {v4}, 3, v0
        v_lshl_add_u32 {v3}, {v4}, 3, {v3}
        s_lshl_b32 {T0}, {sW}, 12
        s_add_u32 {T0}, {T0}, {lds}
        v_add_u32 {v3}, {T0}, {v3}
        s_lshl_b32 {T0}, {sW}, 7
        s_add_u32 {T0}, {T0}, {L_SC}
        v_lshl_add_u32 {v1}, v0, 1, {T0}
        v_lshl_add_u32 {v2}, {v2}, 4, {T0}
        v_and_b32 {v4}, 31, v0
        s_lshl_b32 {T0}, {sW}, 2
        s_add_u32 {T0}, {T0}, {L_P}
        v_lshl_add_u32 {v4}, {v4}, 5, {T0}
        """)

    def mod_silu(self, c, R, A):
        a = self.a
        a(f"""
        v_lshlrev_b32 v{c}, 16, v{c}
        v_mul_f32 v{c + 1}, {f2u(-LOG2E)}, v{c}
        v_exp_f32 v{c + 1}, v{c + 1}
        v_add_f32 v{c + 1}, 1.0, v{c + 1}
        v_rcp_f32 v{c + 1}, v{c + 1}
        v_mul_f32 v{c}, v{c}, v{c + 1}
        v_cvt_pk_bf16_f32 v{c}, v{c}, v{c}
        ds_write_b16 v{A[0]}, v{c}
        """)
        for i in range(4):
            a(f"ds_read_b128 {vr(R + 4 * i)}, v{A[1]} offset:{32 * i}")

    def mod_tr(self, R, A):
        a = self.a
        for i in range(4):
            a(f"ds_read_b64_tr_b16 {vr(R + 16 + 4 * i, 2)}, v{A[2]} offset:{1024 * i}")
            a(f"ds_read_b64_tr_b16 {vr(R + 18 + 4 * i, 2)}, v{A[2]} offset:{1024 * i + 256}")

    def mod_mm(self, R, A, write=True):
        a = self.a
        for i in range(4):
            c = "0" if i == 0 else vr(R + 32, 16)
            a(f"v_mfma_f32_32x32x16_bf16 {vr(R + 32, 16)}, {vr(R + 4 * i)}, {vr(R + 16 + 4 * i)}, {c}")
        if write:
            return a(f"ds_write_b32 v{A[3]}, v{R + 32}")

    def mod_fin(self, R, A, stask):
        a = self.a
        a(f"v_lshlrev_b32 v{A[0]}, 6, v8")
        a(f"v_add_u32 v{A[0]}, {L_P}, v{A[0]}")
        for i in range(4):
            a(f"ds_read_b128 {vr(R + 4 * i)}, v{A[0]} offset:{16 * i}")
        p = lambda i: vr(R + i, 2)
        return a(f"""
        s_lshr_b32 {T0}, {stask}, 4
        s_cmp_eq_u32 {T0}, 1
        s_cselect_b32 {T1}, 1.0, 0
        s_cmp_eq_u32 {T0}, 4
        s_cselect_b32 {T1}, 1.0, {T1}
        s_lshl_b32 {T0}, {stask}, 7
        s_add_u32 {T0}, {T0}, {WS_MODG}
        v_mov_b32 v{R + 17}, {sTAG}
        v_lshlrev_b32 v{A[1]}, 3, v0
        v_pk_add_f32 {p(0)}, {p(0)}, {p(2)}
        v_pk_add_f32 {p(4)}, {p(4)}, {p(6)}
        v_pk_add_f32 {p(8)}, {p(8)}, {p(10)}
        v_pk_add_f32 {p(12)}, {p(12)}, {p(14)}
        v_pk_add_f32 {p(0)}, {p(0)}, {p(4)}
        v_pk_add_f32 {p(8)}, {p(8)}, {p(12)}
        v_add_f32 v{R}, v{R}, v{R + 1}
        v_add_f32 v{R + 8}, v{R + 8}, v{R + 9}
        v_cvt_pk_bf16_f32 v{R}, v{R}, v{R + 8}
        v_lshlrev_b32 v{R + 2}, 16, v{R}
        v_and_b32 v{R + 3}, 0xffff0000, v{R}
        v_add_f32 v{R + 2}, {T1}, v{R + 2}
        v_add_f32 v{R + 3}, {T1}, v{R + 3}
        v_cvt_pk_bf16_f32 v{R + 16}, v{R + 2}, v{R + 3}
        s_mov_b64 exec, 0xffff
        buffer_store_dwordx2 {p(16)}, v{A[1]}, {sWS}, {T0} offen sc1
        s_mov_b64 exec, -1
        """)

    def ln1_stats(self):
        a = self.a
        for i in range(4):
            a(f"v_lshlrev_b32 v{24 + 2 * i}, 16, v{20 + i}")
            a(f"v_and_b32 v{25 + 2 * i}, 0xffff0000, v{20 + i}")
        a("""
        v_pk_add_f32 v[32:33], v[24:25], v[26:27]
        v_pk_add_f32 v[34:35], v[28:29], v[30:31]
        v_pk_add_f32 v[32:33], v[32:33], v[34:35]
        v_add_f32 v32, v32, v33
        """)

        def wave_sum(v):
            for m in ("row_shr:1 row_mask:0xf", "row_shr:2 row_mask:0xf", "row_shr:4 row_mask:0xf",
                      "row_shr:8 row_mask:0xf", "row_bcast:15 row_mask:0xa", "row_bcast:31 row_mask:0xc"):
                a(f"v_add_f32_dpp {v}, {v}, {v} {m} bank_mask:0xf")

        wave_sum("v32")
        a(f"v_mul_f32 v32, {f2u(1.0 / 512)}, v32")
        a(f"v_readlane_b32 {T0}, v32, 63")
        for i in range(8):
            a(f"v_subrev_f32 v{24 + i}, {T0}, v{24 + i}")
        a("v_mul_f32 v33, v24, v24")
        for i in range(1, 8):
            a(f"v_fmac_f32 v33, v{24 + i}, v{24 + i}")
        wave_sum("v33")
        a(f"""
        v_mov_b32 v34, {f2u(1e-5)}
        v_fmac_f32 v34, {f2u(1.0 / 512)}, v33
        v_rsq_f32 v34, v34
        s_getreg_b32 {T0}, hwreg(HW_REG_XCC_ID, 0, 4)
        s_xor_b32 {T0}, {T0}, {sTAG}
        v_mov_b32 v33, {sTAG}
        v_mov_b32 v35, {T0}
        s_lshr_b32 {T0}, {T2}, 6
        s_add_u32 {T0}, {T0}, {WS_STATG - 63 * 16}
        s_mov_b32 exec_lo, 0
        s_mov_b32 exec_hi, 0x80000000
        buffer_store_dwordx4 v[32:35], v6, {sWS}, {T0} offen sc1
        s_mov_b64 exec, -1
        """)

    def scale_pre(self, g, t0, a1, a2, sG, base):
        a = self.a
        a(f"""
        v_and_b32 v{t0}, 0xffff, {g}
        v_and_b32 v{t0 + 1}, 0xffff0000, {g}
        v_lshl_add_u32 {a1}, v0, 3, {sG}
        v_lshl_add_u32 {a2}, v0, 2, {sG}
        ds_write_b64 {a1}, v[{t0}:{t0 + 1}]
        ds_write_b32 {a2}, {g} offset:512
        v_lshl_add_u32 {a1}, v7, 5, {sG}
        v_and_b32 {a2}, 1, v0
        v_lshlrev_b32 {a2}, 7, {a2}
        v_lshl_add_u32 {a2}, v7, 4, {a2}
        v_add_u32 {a2}, {sG}, {a2}
        """)
        for sp in range(2):
            a(f"ds_read_b128 {vr(base + 20 + 8 * sp)}, {a1} offset:{sp * 128}")
            a(f"ds_read_b128 {vr(base + 24 + 8 * sp)}, {a1} offset:{sp * 128 + 16}")
        for sp in range(2):
            a(f"ds_read_b128 {vr(base + 4 * sp)}, {a2} offset:{512 + sp * 64}")

    def scale_frag(self, src, tmp, dst, base, sp):
        a = self.a
        gf = base + 20 + 8 * sp
        for i in range(8):
            a(f"v_dot2_f32_bf16 v{tmp + i}, v{src + (i >> 1)}, v{gf + i}, 0")
        for i in range(4):
            a(f"v_cvt_pk_bf16_f32 v{dst + i}, v{tmp + 2 * i}, v{tmp + 2 * i + 1}")

    def scale_ub(self, nparts, Wp, base, a1):
        a = self.a
        ACC = lambda p: base + 8 + 4 * p
        for sp in range(2):
            for p in range(nparts):
                c = "0" if sp == 0 else vr(ACC(p))
                a(f"v_mfma_f32_16x16x32_bf16 {vr(ACC(p))}, {vr(base + 4 * sp)}, {vr(Wp(sp, p))}, {c}")
        a(f"""
        s_lshl_b32 {T1}, {sW}, 3
        s_add_u32 {T1}, {T1}, {L_UBP}
        v_lshl_add_u32 {a1}, v8, 6, {T1}
        """)
        for p in range(nparts):
            a(f"ds_write_b64 {a1}, {vr(ACC(p), 2)} offset:{p * 1024}")

    def attention(self):
        a = self.a
        vL16 = "v6"
        S = (16, 32)
        O, Q, K, V2 = 48, 64, 68, 72
        V1 = (76, 80)
        base = {"v3": 0, "v4": 0, "v5": 0}

        def rd(dst, addr, t):
            off = t * KVS - base[addr]
            if off > 65535:
                a(f"v_add_u32 {addr}, {off}, {addr}")
                base[addr] += off
                off = 0
            return a(f"ds_read_b128 {vr(dst)}, {addr} offset:{off}")

        def kv_dma(chunk, col):
            a(f"""
            s_add_u32 {T0}, {sGX}, {chunk}
            s_and_b32 {T0}, {T0}, 7
            s_lshl_b32 {T0}, {T0}, 3
            s_add_u32 {T0}, {T0}, {col}
            s_lshl_b32 {T0}, {T0}, 11
            s_add_u32 {T0}, {T0}, {sKVB}
            s_mul_i32 {T1}, {col}, {KVS}
            s_add_u32 m0, {T1}, {chunk * 8 * KVS}
            """)
            self.dma(vL16, sWS, T0, sc="sc1")
            return self.dma(vL16, sWS, T0, off=1024, sc="sc1")

        H = {}
        side = {}

        def at(t, fn):
            side.setdefault(t, []).append(fn)

        o = self.opt
        kvld = f"buffer_load_dword v84, v85, {sWS}, {T4} offen sc1"

        def onlyA(fn):
            def g():
                lab = a.newlabel("L_onlyA")
                a(f"s_cmp_ge_u32 {sW}, 4")
                a(f"s_cbranch_scc1 {lab}")
                s0 = a.snap()
                fn()
                a.merge(s0)
                a.L(lab)
            return g

        def s0_flag():
            a.waith(self.hKV)
            self.flag_store("v91", vL16, T5, "sc1")

        def s0_issue():
            a(f"""
            v_and_b32 v85, 7, v0
            v_lshlrev_b32 v85, 7, v85
            v_bfe_u32 v84, v0, 3, 1
            v_lshl_add_u32 v85, v84, 4, v85
            s_lshl_b32 {T4}, {sJ}, 10
            s_lshl_b32 {T1}, {sW}, 2
            s_add_u32 {T4}, {T4}, {T1}
            s_add_u32 {T4}, {T4}, {WS_KVFLAG}
            """)
            H["kvf"] = a(kvld)

        def s0_poll():
            self.check(H["kvf"], kvld, ["v84"])
            self.stamp("kvflag", 1)
            a(f"s_add_u32 {T2}, {sW}, 4")
            for ch in (1, 2):
                kv_dma(ch, sW)
                H[ch] = kv_dma(ch, T2)
            a("s_setprio 0")

        at(o.get("tf", 2), onlyA(s0_flag))
        at(o.get("ti", 4), onlyA(s0_issue))
        at(o.get("tp", 5), onlyA(s0_poll))
        bars = {1: ((1,), (3, 4)), 2: ((2,), (5,)), 3: ((3, 4), (6, 7)), 5: ((5, 6, 7), ())}
        if o.get("allbar"):
            bars = {c: ((c,), (c + 2,) if c + 2 < 8 else ()) for c in range(1, 8)}
        bl = sorted(bars)
        for c in bl:
            def bar(c=c):
                a.waith(*[H[k] for k in bars[c][0]], *H.get(("extra", c), []))
                a.waith(*H.get(("lds", c), []))
                self.stamp(f"pre{c}", 2)
                a("s_barrier")
                self.stamp(f"bar{c}", (1, 2))
                a("s_setprio 3")
                for k in bars[c][1]:
                    H[k] = kv_dma(k, sW)
            t0 = 8 * c - 2
            t1 = 8 * bl[bl.index(c) + 1] - 2 if c != bl[-1] else 64
            n = t1 - t0
            at(t0, bar)
            at(t0 + n // 2, lambda: a("s_setprio 2"))
            at(t1 - max(2, n // 6), lambda: a("s_setprio 1"))
            at(t1 - 1, lambda: a("s_setprio 0"))
        self.side_work(at, H)

        rd(K, "v3", 0)
        rd(V1[0], "v4", 0)
        rd(V1[1], "v4", 1)
        a(f"""
        v_and_b32 v86, 7, v0
        v_mul_u32_u24 v90, {8 * KVS}, v86
        v_add_u32 v90, {T3}, v90
        v_lshlrev_b32 v86, 2, v86
        v_add_u32 v86, {L_SC}, v86
        """)
        H[("lds", 1)] = [a("ds_write_b128 v90, v[124:127] offset:2048")]
        a("ds_read_b32 v86, v86")
        a(f"s_cmp_ge_u32 {sW}, 4")
        a(f"s_cbranch_scc0 L_prioA")
        s0 = a.snap()
        s0_flag()
        a("s_branch L_prio0")
        s1 = a.snap()
        a.restore(s0)
        a.L("L_prioA")
        a("s_setprio 1")
        a.merge(s1)
        a.L("L_prio0")
        a(f"""
        v_cmp_ne_u32 vcc, 0, v86
        s_cmp_eq_u64 vcc, 0
        s_cselect_b32 {sLOC}, 1, 0
        """)
        if self.force_safe:
            a(f"s_mov_b32 {sLOC}, 0")
        for i in range(16):
            a(f"v_mov_b32 v{O + i}, 0")
        a(f"v_mfma_f32_32x32x16_bf16 {vr(S[0], 16)}, {vr(K)}, {vr(Q)}, 0")
        rd(K, "v3", 1)
        for t in range(64):
            Sa, Sb = S[t & 1], S[(t + 1) & 1]
            a.C(f"tile {t}")
            for fn in side.get(t, []):
                fn()
            e = lambda i: a(f"v_exp_f32 v{Sa + i}, v{Sa + i}")
            e(0)
            if t > 0:
                a.waith(hv2, hk)
            e(1)
            if t > 0:
                a(f"v_smfmac_f32_32x32x32_bf16 {vr(O, 16)}, {vr(V2)}, {vr(Sb + 8, 8)}, v2")
            hv2 = rd(V2, "v5", t)
            for i in (2, 3, 4):
                e(i)
            if t + 1 < 64:
                a(f"v_mfma_f32_32x32x16_bf16 {vr(Sb, 16)}, {vr(K)}, {vr(Q)}, 0")
                if t + 2 < 64:
                    hk = rd(K, "v3", t + 2)
            for i in (5, 6, 7, 8, 9):
                e(i)
            a(f"v_smfmac_f32_32x32x32_bf16 {vr(O, 16)}, {vr(V1[t & 1])}, {vr(Sa, 8)}, v2")
            if t + 2 < 64:
                rd(V1[t & 1], "v4", t + 2)
            for i in range(10, 16):
                e(i)
        a(f"v_smfmac_f32_32x32x32_bf16 {vr(O, 16)}, {vr(V2)}, {vr(S[1] + 8, 8)}, v2")
        a("s_setprio 0")
        a(f"""
        s_mov_b32 {T0}, {f2u(2.0 ** -40)}
        s_mov_b32 {T1}, {f2u(2.0 ** 40)}
        v_mov_b32 v16, v{O + 8}
        v_permlane32_swap_b32 v16, v{O + 8}
        v_cmp_nle_f32 vcc, {T0}, v16
        v_cmp_nge_f32 s[82:83], {T1}, v16
        s_or_b64 vcc, vcc, s[82:83]
        """)
        if self.force_slow:
            a("s_branch L_slow")
        else:
            a("s_cbranch_vccnz L_slow")
        self.slow_state = a.snap()
        self.slow_base = dict(base)
        a.L("L_attn_done")
        self.stamp("attn", (0, 1))
        a(f"""
        v_rcp_f32 v16, v16
        s_lshl_b32 {T0}, {sW}, 5
        s_add_u32 {T0}, {T0}, {sJ}
        s_lshl_b32 {T0}, {T0}, 10
        s_add_u32 {T0}, {T0}, {sGRP}
        """)
        for i in range(8):
            a(f"v_mul_f32 v{O + i}, v16, v{O + i}")
        for i in range(4):
            a(f"v_cvt_pk_bf16_f32 v{20 + i}, v{O + 2 * i}, v{O + 2 * i + 1}")
        a(f"""
        s_lshr_b32 {T1}, {sW}, 1
        s_lshl_b32 {T1}, {T1}, 8
        s_lshl_b32 {T2}, {sJ}, 3
        s_add_u32 {T1}, {T1}, {T2}
        s_and_b32 {T2}, {sW}, 1
        s_lshl_b32 {T2}, {T2}, 2
        s_add_u32 {T1}, {T1}, {T2}
        s_add_u32 {T1}, {T1}, {sGRP}
        s_add_u32 {T1}, {T1}, {G_OFLAG}
        v_mov_b32 v17, {sTAG}
        """)

        def st(sc):
            a(f"buffer_store_dwordx4 v[20:23], {vL16}, {sWS}, {T0} offen {sc}")
            a.wait(vm=0)
            self.flag_store("v17", vL16, T1, sc)
        self.pub(st)

    def slow_path(self):
        a = self.a
        a.restore(self.slow_state)
        O, Q, K, V2, V1 = 48, 64, 68, 72, 76
        a.L("L_slow")
        a.wait(vm=0, lg=0)
        for r in ("v3", "v4", "v5"):
            a(f"v_subrev_u32 {r}, {self.slow_base[r]}, {r}")
        a(f"""
        v_mov_b32 v32, 0xff800000
        v_mov_b32 v1, v3
        s_mov_b32 {T0}, 64
        L_slow1:
        ds_read_b128 {vr(K)}, v1
        v_add_u32 v1, {KVS}, v1
        v_mfma_f32_32x32x16_bf16 v[16:31], {vr(K)}, {vr(Q)}, 0
        """)
        for i in range(8):
            a(f"v_max3_f32 v32, v32, v{16 + 2 * i}, v{17 + 2 * i}")
        a(f"""
        s_sub_u32 {T0}, {T0}, 1
        s_cmp_lg_u32 {T0}, 0
        s_cbranch_scc1 L_slow1
        v_mov_b32 v33, v32
        v_permlane32_swap_b32 v32, v33
        v_max_f32 v32, v32, v33
        v_sub_f32 v32, 0, v32
        """)
        for i in range(1, 16):
            a(f"v_mov_b32 v{32 + i}, v32")
        for i in range(16):
            a(f"v_mov_b32 v{O + i}, 0")
        a(f"""
        s_mov_b32 {T0}, 64
        L_slow2:
        ds_read_b128 {vr(K)}, v3
        ds_read_b128 {vr(V1)}, v4
        ds_read_b128 {vr(V2)}, v5
        v_add_u32 v3, {KVS}, v3
        v_add_u32 v4, {KVS}, v4
        v_add_u32 v5, {KVS}, v5
        s_waitcnt lgkmcnt(0)
        v_mfma_f32_32x32x16_bf16 v[16:31], {vr(K)}, {vr(Q)}, v[32:47]
        """)
        for i in range(16):
            a(f"v_exp_f32 v{16 + i}, v{16 + i}")
        a(f"""
        v_smfmac_f32_32x32x32_bf16 {vr(O, 16)}, {vr(V1)}, v[16:23], v2
        v_smfmac_f32_32x32x32_bf16 {vr(O, 16)}, {vr(V2)}, v[24:31], v2
        s_sub_u32 {T0}, {T0}, 1
        s_cmp_lg_u32 {T0}, 0
        s_cbranch_scc1 L_slow2
        v_mov_b32 v16, v{O + 8}
        v_permlane32_swap_b32 v16, v{O + 8}
        s_branch L_attn_done
        """)

    def cond(self, cmp, fn):
        def g():
            a = self.a
            lab = a.newlabel("L_skip")
            a(cmp)
            a(f"s_cbranch_scc1 {lab}")
            s0 = a.snap()
            fn()
            a.merge(s0)
            a.L(lab)
        return g

    def side_work(self, at, H):
        a = self.a
        o = self.opt
        vL16 = "v6"
        X = {}
        PB = 3
        H[("lds", PB)] = []
        only_pf = lambda fn: self.cond(f"s_cmp_ge_u32 {sTASK}, 204", fn)
        only_m2 = lambda fn: self.cond(f"s_cmp_lt_u32 {sJ}, 24", fn)
        only_w = lambda w, fn: self.cond(f"s_cmp_lg_u32 {sW}, {w}", fn)

        def pf_task():
            a(f"""
            s_mul_i32 {T0}, {sGX}, 11
            s_add_u32 {T0}, {T0}, {sJ}
            s_sub_u32 {T1}, {T0}, 11
            s_cmp_lt_u32 {sJ}, 11
            s_cselect_b32 {T0}, {T0}, {T1}
            s_cselect_b32 {T1}, 0, 86
            s_cmp_lt_u32 {T0}, 86
            s_cselect_b32 {T0}, {T0}, 0x100
            s_add_u32 {sTASK}, {T0}, {T1}
            s_lshl_b32 {T0}, {sGX}, 2
            s_add_u32 {T0}, {T0}, {sJ}
            s_add_u32 {T0}, {T0}, 150
            s_cmp_ge_u32 {sJ}, 22
            s_cselect_b32 {sTASK}, {T0}, {sTASK}
            s_cmp_ge_u32 {sJ}, 26
            s_cselect_b32 {sTASK}, 0x100, {sTASK}
            """)

        def pf_issue():
            a(f"""
            s_lshl_b32 {T3}, {sW}, 11
            s_add_u32 {T3}, {T3}, {L_PF}
            s_mov_b32 s55, 0x20000
            v_lshrrev_b32 v84, 1, v0
            v_and_b32 v85, 16, {vL16}
            s_cmp_ge_u32 {sTASK}, 86
            s_cbranch_scc1 L_pf_n1
            s_mov_b64 s[52:53], s[12:13]
            s_mov_b32 s54, {512 * 2752}
            s_movk_i32 {T0}, 2752
            v_mad_u32_u24 v84, v84, {T0}, v85
            s_mul_i32 {T0}, {sW}, {64 * 2752}
            s_lshl_b32 {T1}, {sTASK}, 5
            s_add_u32 {T0}, {T0}, {T1}
            s_add_u32 {T1}, {T0}, {32 * 2752}
            s_lshl_b32 {sPFD}, {sTASK}, 14
            s_add_u32 {sPFD}, {sPFD}, {WS_W1F - L_PF}
            s_add_u32 {sPFD}, {sPFD}, {T3}
            v_lshl_add_u32 v86, v7, 8, {T3}
            v_lshl_add_u32 v86, v8, 3, v86
            s_movk_i32 {T2}, 128
            s_movk_i32 {T4}, 1024
            s_branch L_pf_go
            L_pf_n1:
            s_cmp_ge_u32 {sTASK}, 172
            s_cbranch_scc1 L_pf_n2
            s_mov_b64 s[52:53], s[14:15]
            s_mov_b32 s54, {1376 * 1024}
            v_lshrrev_b32 v84, 3, v0
            v_and_b32 v85, 0x70, {vL16}
            v_lshl_add_u32 v84, v84, 10, v85
            s_sub_u32 {T2}, {sTASK}, 86
            s_lshl_b32 {T0}, {T2}, 14
            s_lshl_b32 {T1}, {sW}, 7
            s_add_u32 {T0}, {T0}, {T1}
            s_add_u32 {T1}, {T0}, 8192
            s_mul_i32 {sPFD}, {sW}, {86 * 2048}
            s_lshl_b32 {T2}, {T2}, 11
            s_add_u32 {sPFD}, {sPFD}, {T2}
            s_add_u32 {sPFD}, {sPFD}, {WS_W2F}
            v_lshrrev_b32 v86, 5, v0
            v_bfe_u32 v87, v0, 2, 2
            v_lshl_add_u32 v86, v86, 3, v87
            v_lshl_add_u32 v86, v86, 7, {T3}
            v_and_b32 v87, 1, v7
            v_lshl_add_u32 v86, v87, 5, v86
            v_and_b32 v87, 3, v0
            v_lshl_add_u32 v86, v87, 3, v86
            s_movk_i32 {T2}, 512
            s_movk_i32 {T4}, 64
            s_branch L_pf_go
            L_pf_n2:
            s_mov_b64 s[52:53], s[8:9]
            s_mov_b32 s54, {512 * 1024}
            v_lshl_add_u32 v84, v84, 10, v85
            s_sub_u32 {T2}, {sTASK}, 172
            s_lshl_b32 {T0}, {sW}, 16
            s_lshl_b32 {T1}, {T2}, 5
            s_add_u32 {T0}, {T0}, {T1}
            s_add_u32 {T1}, {T0}, {32 * 1024}
            s_lshl_b32 {sPFD}, {T2}, 14
            s_add_u32 {sPFD}, {sPFD}, {(WS_WOF - L_PF) & 0xffffffff}
            s_add_u32 {sPFD}, {sPFD}, {T3}
            v_lshrrev_b32 v86, 5, v0
            v_lshl_add_u32 v86, v86, 9, {T3}
            v_and_b32 v87, 31, v0
            v_lshl_add_u32 v86, v87, 3, v86
            s_movk_i32 {T2}, 256
            s_movk_i32 {T4}, 1024
            L_pf_go:
            s_mov_b32 m0, {T3}
            v_add_u32 v87, {T2}, v86
            """)
            self.dma("v84", sPF, T0, sc="nt")
            a(f"s_add_u32 m0, {T3}, 1024")
            a(f"v_add_u32 v88, {T4}, v86")
            X["pf"] = self.dma("v84", sPF, T1, sc="nt")
            a(f"v_add_u32 v89, {T4}, v87")

        def pf_tr():
            a.waith(X["pf"])
            a("""
            ds_read_b64_tr_b16 v[128:129], v86
            ds_read_b64_tr_b16 v[130:131], v87
            ds_read_b64_tr_b16 v[132:133], v88
            ds_read_b64_tr_b16 v[134:135], v89
            """)

        def pf_store():
            a(f"buffer_store_dwordx4 v[128:131], {vL16}, {sWS}, {sPFD} offen sc1")
            h = a(f"buffer_store_dwordx4 v[132:135], {vL16}, {sWS}, {sPFD} offen offset:1024 sc1")
            H[("extra", PB)] = [h]

        def pf_flag():
            a(f"""
            v_mov_b32 v84, {sTAG}
            s_lshl_b32 {T0}, {sTASK}, 7
            s_add_u32 {T0}, {T0}, {WS_PFLAG}
            """)
            self.flag_store("v84", vL16, T0, "sc1")

        MA = (92, 93, 94, 95)

        def m2_issue():
            a(f"""
            s_lshl_b32 {sM2}, {sGX}, 3
            s_add_u32 {sM2}, {sM2}, {sJ}
            s_add_u32 {sM2}, {sM2}, 8
            v_lshrrev_b32 v96, 2, v0
            v_and_b32 v97, 0x30, {vL16}
            s_movk_i32 {T0}, 6144
            v_mad_u32_u24 v96, v96, {T0}, v97
            v_lshlrev_b32 v97, 1, v0
            s_lshl_b32 {T0}, {sW}, 7
            buffer_load_ushort v138, v97, {sC}, {T0} offen
            s_mul_i32 {T0}, {sW}, {64 * 6144}
            s_lshl_b32 {T1}, {sM2}, 6
            s_add_u32 {T0}, {T0}, {T1}
            s_lshl_b32 {T1}, {sW}, 12
            """)
            for i in range(4):
                a(f"s_add_u32 m0, {T1}, {L_WM2 + i * 1024}")
                if i:
                    a(f"s_add_u32 {T0}, {T0}, {16 * 6144}")
                X["wm"] = self.dma("v96", sWM, T0, sc="nt")
            self.mod_addr(L_WM2, MA)

        def m2_tr():
            a.waith(X["wm"])
            self.mod_tr(140, MA)

        def m2_write():
            H[("lds", PB)].append(a(f"ds_write_b32 v{MA[3]}, v172"))

        def ones_again():
            H[("lds", 5)] = [a("ds_write_b128 v90, v[124:127] offset:2048")]

        pfld = f"buffer_load_dword v85, v84, {sWS}, {T5} offen sc1"

        def pf_pissue():
            a(f"""
            s_mul_i32 {T0}, {sCG}, 11
            s_cmp_eq_u32 {sCG}, 7
            s_cselect_b32 {T0}, 76, {T0}
            s_lshl_b32 {T1}, {sW}, 1
            s_add_u32 {sU0}, {T0}, {T1}
            s_add_u32 {sU1}, {sU0}, 1
            s_add_u32 {T1}, {T0}, {sW}
            s_add_u32 {T1}, {T1}, 4
            s_min_u32 {T1}, {T1}, 85
            s_lshl_b32 {T2}, {sCG}, 2
            s_add_u32 {T2}, {T2}, {sW}
            s_sub_u32 {T2}, {T2}, 4
            s_add_u32 {T4}, {T2}, 172
            s_lshl_b32 {T2}, {T2}, 14
            s_add_u32 {T2}, {T2}, {WS_WOF}
            s_lshl_b32 {sB0}, {sU0}, 14
            s_add_u32 {sB0}, {sB0}, {WS_W1F}
            s_cmp_ge_u32 {sW}, 4
            s_cselect_b32 {sB0}, {T2}, {sB0}
            s_cselect_b32 {T4}, {T4}, {sU0}
            s_cselect_b32 {sU1}, {T1}, {sU1}
            s_cselect_b32 {sU0}, {T1}, {sU0}
            s_lshl_b32 {sB1}, {sU1}, 14
            s_add_u32 {sB1}, {sB1}, {WS_W1F}
            s_mul_i32 {T0}, {sW}, 11
            s_cmp_eq_u32 {sW}, 7
            s_cselect_b32 {sKS}, 76, {T0}
            s_add_u32 {T0}, {sKS}, 86
            v_min_u32 v84, 10, v0
            v_add_u32 v84, {T0}, v84
            v_min_u32 v84, 171, v84
            v_writelane_b32 v84, {T4}, 62
            v_writelane_b32 v84, {sU1}, 63
            v_lshlrev_b32 v84, 7, v84
            s_mov_b32 {T5}, {WS_PFLAG}
            s_mul_i32 {sW2B}, {sCG}, {86 * 2048}
            s_lshl_b32 {T0}, {sKS}, 11
            s_add_u32 {sW2B}, {sW2B}, {T0}
            s_add_u32 {sW2B}, {sW2B}, {WS_W2F}
            """)
            X["pfl"] = a(pfld)

        def pf_poll():
            self.check(X["pfl"], pfld, ["v85"])
            self.stamp("pfpoll", 1)

        def wload(i, n=2):
            def f():
                for sb, rb in ((sB0, 128), (sB1, 192)):
                    for k in range(n):
                        off = f" offset:{k * 1024}" if k else ""
                        a(f"buffer_load_dwordx4 {vr(rb + (n * i + k) * 4)}, {vL16}, {sWS}, {sb} offen{off} sc1")
                    a(f"s_add_u32 {sb}, {sb}, {n * 1024}")
            return f

        def touch_w2():
            a(f"""
            v_min_u32 v111, 43, v0
            v_lshlrev_b32 v111, 7, v111
            s_mul_i32 {T0}, {sTQ}, {44 * 128}
            s_add_u32 {T0}, {T0}, {sW2B}
            buffer_load_dword v104, v111, {sWS}, {T0} offen sc1
            """)

        def touch_grp():
            a(f"""
            s_lshl_b32 {T0}, {sJ}, 3
            s_add_u32 {T0}, {T0}, {sW}
            v_min_u32 v111, 39, v0
            v_lshlrev_b32 v111, 7, v111
            s_mul_i32 {T0}, {T0}, {40 * 128}
            s_add_u32 {T0}, {T0}, {sGRP}
            """)
            tm = o.get("tm", 2)
            if tm in (1, 2):
                a(f"buffer_load_dword v105, v111, {sWS}, {T0} offen sc1 nt")
            if tm in (0, 2):
                a(f"buffer_load_dword v107, v111, {sWS}, {T0} offen sc1")

        def touch_code():
            a(f"""
            s_lshl_b32 {T0}, {sJ}, 3
            s_add_u32 {T0}, {T0}, {sW}
            s_lshl_b32 {T1}, {T0}, 7
            s_add_u32 {T1}, {T1}, L_attn_done-L_pc
            s_mov_b64 exec, 1
            buffer_load_dword v106, v6, {sCODE}, {T1} offen
            s_mov_b64 exec, -1
            """)

        def small_loads():
            a(f"""
            v_lshlrev_b32 v84, 4, v7
            s_lshl_b32 {T2}, {sCG}, 2
            s_and_b32 {T0}, {sW}, 3
            s_add_u32 {T2}, {T2}, {T0}
            s_lshl_b32 {T4}, {T2}, 6
            s_add_u32 {T4}, {T4}, {WS_MODG + 512 * 8}
            s_add_u32 {T3}, {T4}, {512 * 8}
            v_and_b32 v86, 7, v0
            v_lshlrev_b32 v86, 5, v86
            s_lshl_b32 {T5}, {sCG}, 8
            s_add_u32 {T5}, {T5}, {WS_MODG + 1280 * 8}
            s_lshl_b32 {sM2}, {sW}, 8
            s_add_u32 {sM2}, {sM2}, {WS_MODG + 768 * 8}
            """)
            X["gagb"] = f"""
            buffer_load_dwordx4 v[100:103], v84, {sWS}, {T4} offen sc1
            buffer_load_dwordx4 v[88:91], v84, {sWS}, {T3} offen sc1
            buffer_load_dwordx4 v[120:123], v86, {sWS}, {T5} offen sc1
            buffer_load_dwordx4 v[124:127], v86, {sWS}, {T5} offen offset:16 sc1
            buffer_load_dwordx2 v[108:109], v13, {sWS}, {sM2} offen sc1"""
            X["small"] = a(X["gagb"])

        def xr_loads():
            a(f"""
            v_lshlrev_b32 v85, 10, v8
            v_lshl_add_u32 v85, v7, 3, v85
            s_lshl_b32 {T0}, {sGX}, 18
            s_lshl_b32 {T1}, {sTQ}, 16
            s_add_u32 {T0}, {T0}, {T1}
            s_lshl_b32 {T2}, {T2}, 5
            s_add_u32 {T0}, {T0}, {T2}
            """)
            for T in range(4):
                a(f"buffer_load_dwordx2 {vr(92 + 2 * T, 2)}, v85, {sX}, {T0} offen")
                if T < 3:
                    a(f"s_add_u32 {T0}, {T0}, 16384")

        def small_check():
            self.check(X["small"], X["gagb"], ["v101", "v103", "v89", "v91", "v121", "v123", "v125", "v127", "v109"])
            a(f"""
            v_lshrrev_b32 v110, 1, v13
            v_xor_b32 v110, 0x400, v110
            s_lshl_b32 {T0}, {sW}, 7
            s_add_u32 {T0}, {T0}, {L_GS}
            v_add_u32 v110, {T0}, v110
            ds_write_b32 v110, v108
            """)

        ns = o.get("ns", 0)
        if not ns & 1:
            at(6, pf_task)
            at(7, only_pf(pf_issue))
            at(o.get("ttr", 16), only_pf(pf_tr))
            at(o.get("ttr", 16) + 1, only_pf(pf_store))
            at(22, only_w(0, only_pf(pf_flag)))
        if not ns & 2:
            at(8, only_m2(m2_issue))
            at(15, only_m2(lambda: self.mod_silu(138, 140, MA)))
            at(19, only_m2(m2_tr))
            at(20, only_m2(lambda: self.mod_mm(140, MA, write=False)))
            at(21, only_m2(m2_write))
            at(23, ones_again)
            at(23, only_w(4, only_m2(lambda: self.mod_fin(140, MA, sM2))))
        tp = o.get("tpp", 27)
        at(tp, pf_pissue)
        if not ns & 1:
            at(tp + 3, pf_poll)
        if not ns & 4:
            ws_ = o.get("wstep", 2)
            for i in range(8):
                at(tp + 4 + ws_ * i, wload(i))
        if not ns & 8:
            at(o.get("tsm", 47), small_loads)
            at(o.get("tsm", 47) + 1, self.cond(f"s_cmp_lt_u32 {sW}, 4", xr_loads))
            if not ns & 2:
                at(o.get("tsm", 47) + 5, small_check)
        if not ns & 16:
            at(o.get("tg", 49), self.cond(f"s_cmp_eq_u32 {sLOC}, 0", touch_grp))
            at(o.get("tw2", 55), touch_w2)
            at(o.get("tw2", 55) + 1, touch_code)

    def post(self):
        a = self.a
        o = self.opt
        vL16 = "v6"
        a(f"""
        v_and_b32 v1, 7, v0
        v_lshlrev_b32 v1, 2, v1
        s_lshl_b32 {T0}, {sTQ}, 8
        s_lshl_b32 {T1}, {sW}, 5
        s_add_u32 {T0}, {T0}, {T1}
        s_add_u32 {T0}, {T0}, {sGRP}
        s_add_u32 {T0}, {T0}, {G_OFLAG}
        s_lshl_b32 {T2}, {sTQ}, 16
        s_lshl_b32 {T3}, {sW}, 12
        s_add_u32 {T2}, {T2}, {T3}
        s_add_u32 {T2}, {T2}, {sGRP}
        """)
        a.wait(lg=0)
        a("s_barrier")
        self.poll(f"buffer_load_dword v16, v1, {sWS}, {T0} offen sc1", ["v16"])
        self.stamp("oflag")

        def tile_dma(ldsb, goff):
            for tt in range(2):
                a(f"s_add_u32 m0, {T3}, {ldsb + tt * 32768}")
                a(f"s_add_u32 {T0}, {T2}, {goff + tt * 32768}")
                for k in range(4):
                    h = self.dma(vL16, sWS, T0, off=k * 1024, sc="sc1")
            return h

        h = tile_dma(L_O, G_O)
        a(f"""
        v_and_b32 v11, 1, v0
        v_lshlrev_b32 v11, 10, v11
        v_lshl_add_u32 v11, v7, 4, v11
        v_add_u32 v11, {L_GS}, v11
        """)
        for s in range(12):
            a(f"ds_read_b128 {vr(16 + 4 * s)}, v11 offset:{s * 64}")
        a(f"""
        v_lshlrev_b32 v9, 9, v7
        v_lshl_add_u32 v9, v8, 4, v9
        v_add_u32 v10, {L_X1}, v9
        """)
        for s in range(12, 16):
            a(f"ds_read_b128 {vr(16 + 4 * s)}, v11 offset:{s * 64}")

        def ub_mm(i):
            for s in range(16):
                c = "0" if s < 2 else vr(80 + 4 * (s & 1))
                a(f"v_mfma_f32_16x16x32_bf16 {vr(80 + 4 * (s & 1))}, {vr(128 + 64 * i + 4 * s)}, {vr(16 + 4 * s)}, {c}")
            a("v_pk_add_f32 v[80:81], v[80:81], v[84:85]")
            a("v_pk_add_f32 v[82:83], v[82:83], v[86:87]")
            for r in range(4):
                a(f"v_mov_b32_dpp v{104 + 8 * i + r}, v{80 + r} quad_perm:[0,0,2,2] row_mask:0xf bank_mask:0xf")
                a(f"v_mov_b32_dpp v{108 + 8 * i + r}, v{80 + r} quad_perm:[1,1,3,3] row_mask:0xf bank_mask:0xf")

        a(f"s_cmp_lt_u32 {sW}, 4")
        a("s_cbranch_scc1 L_cA")
        s0 = a.snap()
        ub_mm(1)
        a("""
        v_and_b32 v101, 0xffff0000, v100
        v_lshlrev_b32 v100, 16, v100
        v_and_b32 v103, 0xffff0000, v102
        v_lshlrev_b32 v102, 16, v102
        v_and_b32 v89, 0xffff0000, v88
        v_lshlrev_b32 v88, 16, v88
        v_and_b32 v91, 0xffff0000, v90
        v_lshlrev_b32 v90, 16, v90
        """)
        a.waith(h)
        a("s_barrier")
        self.stamp("oland")
        BUF = lambda s, T: 16 + ((s % 3) * 4 + T) * 4
        ACC = lambda T: 64 + 4 * T

        def aread(addr, s, Ts=range(4)):
            for T in Ts:
                a(f"ds_read_b128 {vr(BUF(s, T))}, {addr} offset:{(T >> 1) * 32768 + s * 2048 + (T & 1) * 256}")

        aread("v9", 0)
        aread("v9", 1)
        for s in range(16):
            for T in range(4):
                c = "0" if s == 0 else vr(ACC(T))
                a(f"v_mfma_f32_16x16x32_bf16 {vr(ACC(T))}, {vr(128 + 4 * s)}, {vr(BUF(s, T))}, {c}")
                if s + 2 < 16:
                    aread("v9", s + 2, (T,))
            if s in (5, 6, 7, 8):
                for i in range(2):
                    k = (s - 5) * 2 + i
                    a(f"v_lshlrev_b32 v{128 + 2 * k}, 16, v{92 + k}")
                    a(f"v_and_b32 v{129 + 2 * k}, 0xffff0000, v{92 + k}")
            if s == 1:
                a(f"""
                s_lshl_b32 {T4}, {sCG}, 2
                s_add_u32 {T4}, {T4}, {sW}
                s_sub_u32 {T4}, {T4}, 4
                s_lshl_b32 {T0}, {T4}, 10
                s_lshl_b32 {T1}, {sTQ}, 16
                s_add_u32 {T0}, {T0}, {T1}
                """)
            if s == 2:
                a(f"""
                s_lshr_b32 {sM2}, {T1}, 2
                s_add_u32 {T0}, {T0}, {sGRP}
                s_add_u32 {T0}, {T0}, {G_X1}
                s_add_u32 {T5}, {T0}, 32768
                s_lshl_b32 {T1}, {T4}, 9
                s_add_u32 {sM2}, {sM2}, {T1}
                """)
            if s == 3:
                a(f"""
                s_add_u32 {sM2}, {sM2}, {sGRP}
                s_add_u32 {sM2}, {sM2}, {G_ST}
                s_lshl_b32 {T4}, {T4}, 2
                s_lshl_b32 {T1}, {sTQ}, 8
                s_add_u32 {T1}, {T1}, {T4}
                s_add_u32 {T1}, {T1}, {sGRP}
                s_add_u32 {T1}, {T1}, {G_X1FLAG}
                """)
            if s == 10:
                a(f"""
                v_mov_b32 v1, {sTAG}
                v_mov_b32 v2, 0x3f803f80
                v_lshlrev_b32 v3, 3, v0
                s_lshl_b32 {T4}, {sW}, 5
                s_add_u32 {T4}, {T4}, {L_RES - 128}
                """)
            if s == 11:
                a(f"""
                v_mul_u32_u24 v4, 144, v8
                v_lshl_add_u32 v4, v7, 3, v4
                v_add_u32 v4, {T4}, v4
                """)
        for T in range(4):
            for i in range(2):
                a(f"v_pk_fma_f32 {vr(ACC(T) + 2 * i, 2)}, {vr(ACC(T) + 2 * i, 2)}, {vr(100 + 2 * i, 2)}, {vr(128 + 4 * T + 2 * i, 2)}")
            for i in range(2):
                a(f"v_pk_mul_f32 {vr(32 + 4 * T + 2 * i, 2)}, {vr(ACC(T) + 2 * i, 2)}, {vr(88 + 2 * i, 2)}")
            for i in range(2):
                a(f"v_cvt_pk_bf16_f32 v{16 + 2 * T + i}, v{32 + 4 * T + 2 * i}, v{33 + 4 * T + 2 * i}")
        for T in range(4):
            for i in range(2):
                a(f"v_cvt_pk_bf16_f32 v{24 + 2 * T + i}, v{ACC(T) + 2 * i}, v{ACC(T) + 2 * i + 1}")
            if T == 0:
                a("""
                v_permlane16_swap_b32 v16, v18
                v_permlane16_swap_b32 v17, v19
                v_permlane16_swap_b32 v20, v22
                v_permlane16_swap_b32 v21, v23
                """)

                def st(sc):
                    a(f"buffer_store_dwordx4 v[16:19], {vL16}, {sWS}, {T0} offen {sc}")
                    a(f"buffer_store_dwordx4 v[20:23], {vL16}, {sWS}, {T5} offen {sc}")
                self.pub(st)
        for T in range(4):
            a(f"v_dot2_f32_bf16 v{32 + 2 * T}, v{24 + 2 * T}, v2, 0")
            a(f"v_dot2_f32_bf16 v{33 + 2 * T}, v{24 + 2 * T}, v{24 + 2 * T}, 0")
        for T in range(4):
            a(f"v_dot2_f32_bf16 v{32 + 2 * T}, v{25 + 2 * T}, v2, v{32 + 2 * T}")
            a(f"v_dot2_f32_bf16 v{33 + 2 * T}, v{25 + 2 * T}, v{25 + 2 * T}, v{33 + 2 * T}")
        for T in range(4):
            a(f"ds_write_b64 v4, {vr(24 + 2 * T, 2)} offset:{T * 16 * 144}")
        a("""
        v_permlane32_swap_b32 v32, v36
        v_permlane32_swap_b32 v33, v37
        v_permlane32_swap_b32 v34, v38
        v_permlane32_swap_b32 v35, v39
        v_pk_add_f32 v[32:33], v[32:33], v[36:37]
        v_pk_add_f32 v[34:35], v[34:35], v[38:39]
        v_permlane16_swap_b32 v32, v34
        v_permlane16_swap_b32 v33, v35
        v_pk_add_f32 v[32:33], v[32:33], v[34:35]
        """)

        def st(sc):
            a(f"buffer_store_dwordx2 v[32:33], v3, {sWS}, {sM2} offen {sc}")
            a.wait(vm=0)
            self.flag_store("v1", vL16, T1, sc)
        self.pub(st)
        a("s_branch L_noC")
        s1 = a.snap()
        a.restore(s0)
        a.L("L_cA")
        a.waith(h)
        a("s_barrier")
        ub_mm(0)
        ub_mm(1)
        a.merge(s1)
        a.L("L_noC")
        self.stamp("cdone")
        a(f"""
        v_and_b32 v1, 3, v0
        v_lshlrev_b32 v1, 2, v1
        s_lshl_b32 {T0}, {sTQ}, 8
        s_lshl_b32 {T1}, {sW}, 4
        s_add_u32 {T0}, {T0}, {T1}
        s_add_u32 {T0}, {T0}, {sGRP}
        s_add_u32 {T0}, {T0}, {G_X1FLAG}
        s_lshl_b32 {T4}, {sTQ}, 14
        s_lshl_b32 {T1}, {sW}, 11
        s_add_u32 {T4}, {T4}, {T1}
        s_add_u32 {T4}, {T4}, {sGRP}
        s_add_u32 {T4}, {T4}, {G_ST}
        v_lshlrev_b32 v3, 3, v0
        """)
        self.poll(f"buffer_load_dword v24, v1, {sWS}, {T0} offen sc1", ["v24"])
        self.stamp("yflag")
        for i in range(4):
            a(f"buffer_load_dwordx2 {vr(92 + 2 * i, 2)}, v3, {sWS}, {T4} offen offset:{i * 512} sc1")
        h = tile_dma(L_X1, G_X1)
        a(f"""
        s_lshl_b32 {T0}, {sW}, 9
        s_add_u32 {T1}, {T0}, {L_SP}
        v_add_u32 v1, {T1}, v3
        s_add_u32 {T1}, {T0}, {L_SF}
        v_add_u32 v5, {T1}, v3
        v_lshl_add_u32 v4, v8, 3, {T1}
        v_add_u32 v11, {L_SP}, v3
        v_lshrrev_b32 v2, 3, v0
        v_mul_u32_u24 v2, 144, v2
        v_and_b32 v3, 0x70, {vL16}
        s_mul_i32 {T0}, {sW}, {8 * 144}
        s_add_u32 {T0}, {T0}, {L_RES}
        v_add3_u32 v3, v2, v3, {T0}
        v_pk_add_f32 v[92:93], v[92:93], v[94:95]
        v_pk_add_f32 v[96:97], v[96:97], v[98:99]
        v_pk_add_f32 v[92:93], v[92:93], v[96:97]
        ds_write_b64 v1, v[92:93]
        """)
        a.waith(h)
        a.wait(lg=0)
        a("s_barrier")
        self.stamp("x1land")
        ACC2 = lambda i, T: 64 + 16 * i + 4 * T

        def w2load(ks, f):
            rb = 128 + 64 * f + 4 * ks
            off = (ks & 1) * 2048 + f * 1024
            a(f"buffer_load_dwordx4 {vr(rb)}, {vL16}, {sWS}, {sW2B} offen offset:{off} sc1")

        def fin1():
            for i in range(4):
                a(f"ds_read_b64 {vr(96 + 2 * i, 2)}, v11 offset:{i * 512}")

        def fin2():
            a("""
            v_pk_add_f32 v[96:97], v[96:97], v[98:99]
            v_pk_add_f32 v[100:101], v[100:101], v[102:103]
            v_pk_add_f32 v[12:13], v[96:97], v[100:101]
            """)
            for i in range(4):
                a(f"ds_read_b64 {vr(96 + 2 * i, 2)}, v11 offset:{(4 + i) * 512}")

        def fin3():
            a(f"""
            v_pk_add_f32 v[96:97], v[96:97], v[98:99]
            v_pk_add_f32 v[100:101], v[100:101], v[102:103]
            v_pk_add_f32 v[12:13], v[12:13], v[96:97]
            v_pk_add_f32 v[12:13], v[12:13], v[100:101]
            v_mul_f32 v12, {f2u(1.0 / 512)}, v12
            v_mul_f32 v13, {f2u(1.0 / 512)}, v13
            """)

        def fin4():
            a(f"""
            v_fma_f32 v13, -v12, v12, v13
            v_max_f32 v13, 0, v13
            v_add_f32 v13, {f2u(1e-5)}, v13
            v_rsq_f32 v14, v13
            v_mul_f32 v15, -v12, v14
            ds_write_b64 v5, v[14:15]
            """)
            for T in range(4):
                a(f"ds_read_b64 {vr(96 + 2 * T, 2)}, v4 offset:{T * 128}")
            a("ds_read_b128 v[12:15], v3")

        def fin5():
            a(f"""
            s_mul_i32 {T0}, {sTQ}, {2 * 86 * 1024}
            s_add_u32 {T0}, {T0}, {sGRP}
            s_add_u32 {T2}, {T0}, {G_HID}
            s_lshl_b32 {T0}, {sU0}, 10
            s_add_u32 {T0}, {T0}, {T2}
            s_add_u32 {T5}, {T0}, {86 * 1024}
            s_lshl_b32 {T1}, {sTQ}, 3
            """)

        def fin6():
            a(f"""
            s_add_u32 {T1}, {T1}, {sCG}
            s_lshl_b32 {T1}, {T1}, 3
            s_add_u32 {T1}, {T1}, {sW}
            s_lshl_b32 {T1}, {T1}, 2
            s_add_u32 {T1}, {T1}, {sGRP}
            s_add_u32 {T1}, {T1}, {G_HFLAG}
            v_mov_b32 v2, {sTAG}
            """)

        fin = {1: fin1, 3: fin2, 5: fin3, 6: fin4, 11: fin5, 12: fin6}

        def dloop(sets):
            aread("v10", 0)
            aread("v10", 1)
            for s in range(16):
                for T in range(4):
                    for i in sets:
                        c = "0" if s == 0 else vr(ACC2(i, T))
                        a(f"v_mfma_f32_16x16x32_bf16 {vr(ACC2(i, T))}, {vr(128 + 64 * i + 4 * s)}, {vr(BUF(s, T))}, {c}")
                    if s + 2 < 16:
                        aread("v10", s + 2, (T,))
                if s < 11:
                    w2load(s, 0)
                    w2load(s, 1)
                    if s & 1:
                        a(f"s_add_u32 {sW2B}, {sW2B}, 4096")
                if s in fin:
                    fin[s]()

        def depi(i, ub):
            for T in range(4):
                for k in range(2):
                    t = vr(48 + 4 * (T & 1) + 2 * k, 2)
                    a(f"v_pk_fma_f32 {t}, {vr(96 + 2 * T, 2)}, {vr(ub + 2 * k, 2)}, {vr(ub + 4 + 2 * k, 2)} op_sel:[1,0,0] op_sel_hi:[1,1,1]")
                for k in range(2):
                    t = vr(48 + 4 * (T & 1) + 2 * k, 2)
                    acc = vr(ACC2(i, T) + 2 * k, 2)
                    a(f"v_pk_fma_f32 {acc}, {vr(96 + 2 * T, 2)}, {acc}, {t} op_sel_hi:[0,1,1]")
                for k in range(2):
                    a(f"v_cvt_pk_bf16_f32 v{16 + 8 * i + 2 * T + k}, v{ACC2(i, T) + 2 * k}, v{ACC2(i, T) + 2 * k + 1}")
                for k in range(2):
                    r = 16 + 8 * i + 2 * T + k
                    a(f"v_pk_max_i16 v{r}, v{r}, 0")
            b = 16 + 8 * i
            a(f"""
            v_permlane16_swap_b32 v{b}, v{b + 2}
            v_permlane16_swap_b32 v{b + 1}, v{b + 3}
            v_permlane16_swap_b32 v{b + 4}, v{b + 6}
            v_permlane16_swap_b32 v{b + 5}, v{b + 7}
            """)

        a(f"s_cmp_ge_u32 {sW}, 4")
        a("s_cbranch_scc1 L_dB")
        s0 = a.snap()
        dloop((0, 1))
        depi(0, 104)

        def stA0(sc):
            a(f"buffer_store_dwordx4 v[16:19], {vL16}, {sWS}, {T0} offen {sc}")
            a(f"buffer_store_dwordx4 v[20:23], {vL16}, {sWS}, {T5} offen {sc}")
        self.pub(stA0)
        depi(1, 112)

        def stA(sc):
            a(f"buffer_store_dwordx4 v[24:27], {vL16}, {sWS}, {T0} offen offset:1024 {sc}")
            a(f"buffer_store_dwordx4 v[28:31], {vL16}, {sWS}, {T5} offen offset:1024 {sc}")
            a.wait(vm=0)
            self.flag_store("v2", vL16, T1, sc)
        self.pub(stA)
        a("s_branch L_dDone")
        s1 = a.snap()
        a.restore(s0)
        a.L("L_dB")
        dloop((1,))
        depi(1, 112)
        a(f"""
        s_cmp_lt_u32 {sCG}, 6
        s_cselect_b32 {T3}, 7, 6
        """)

        def stB(sc):
            lab = a.newlabel("L_nost")
            a(f"s_cmp_ge_u32 {sW}, {T3}")
            a(f"s_cbranch_scc1 {lab}")
            a(f"buffer_store_dwordx4 v[24:27], {vL16}, {sWS}, {T0} offen {sc}")
            a(f"buffer_store_dwordx4 v[28:31], {vL16}, {sWS}, {T5} offen {sc}")
            a.L(lab)
            a.wait(vm=0)
            self.flag_store("v2", vL16, T1, sc)
        self.pub(stB)
        a.merge(s1)
        a.L("L_dDone")
        self.stamp("ddone")
        a.wait(lg=0)
        a("s_barrier")
        a(f"""
        v_and_b32 v1, 7, v0
        v_lshlrev_b32 v1, 2, v1
        s_lshl_b32 {T0}, {sTQ}, 3
        s_add_u32 {T0}, {T0}, {sW}
        s_lshl_b32 {T0}, {T0}, 5
        s_add_u32 {T0}, {T0}, {sGRP}
        s_add_u32 {T0}, {T0}, {G_HFLAG}
        s_lshl_b32 {T4}, {sKS}, 10
        s_add_u32 {T2}, {T2}, {T4}
        """)
        self.poll(f"buffer_load_dword v32, v1, {sWS}, {T0} offen sc1", ["v32"])
        self.stamp("hflag")
        ring = [80 + 4 * i for i in range(10)] + [172 + 4 * i for i in range(5)] + [236 + 4 * i for i in range(5)]
        HB = lambda tt, ks: ring[(tt * 11 + ks) % 20]

        def hload(n):
            tt, ks = divmod(n, 11)
            if ks % 4 == 0:
                a(f"s_add_u32 {T0}, {T2}, {tt * 86 * 1024 + ks * 1024}")
            o = f" offset:{(ks % 4) * 1024}" if ks % 4 else ""
            a(f"buffer_load_dwordx4 {vr(HB(tt, ks))}, {vL16}, {sWS}, {T0} offen{o} sc1")

        for n in range(20):
            hload(n)
        EA = lambda tt, f: 16 + 32 * tt + 16 * f
        a(f"""
        v_and_b32 v1, 31, v0
        v_mul_u32_u24 v1, {RED_ROW}, v1
        v_lshrrev_b32 v2, 5, v0
        v_lshl_add_u32 v1, v2, 4, v1
        s_mul_i32 {T1}, {sW}, {RED_W}
        v_add_u32 v9, {T1}, v1
        v_lshrrev_b32 v2, 3, v0
        v_and_b32 v3, 7, v0
        v_mul_u32_u24 v1, {RED_ROW}, v2
        v_lshl_add_u32 v1, v3, 5, v1
        s_mul_i32 {T1}, {sW}, {8 * RED_ROW}
        v_add_u32 v10, {T1}, v1
        v_add_u32 v11, {4 * RED_W}, v10
        v_lshlrev_b32 v2, 10, v2
        v_lshl_add_u32 v4, v3, 4, v2
        """)

        def pwrite(tt, n):
            f, q = divmod(n, 4)
            a(f"ds_write_b128 v9, {vr(EA(tt, f) + 4 * q)} offset:{tt * 32 * RED_ROW + f * 128 + q * 32}")

        for tt in range(2):
            for ks in range(11):
                if ks == 10:
                    lab = a.newlabel("L_k10")
                    a(f"s_cmp_ge_u32 {sW}, 6")
                    a(f"s_cbranch_scc1 {lab}")
                    sk = a.snap()
                for f in range(2):
                    c = "0" if ks == 0 else vr(EA(tt, f), 16)
                    a(f"v_mfma_f32_32x32x16_bf16 {vr(EA(tt, f), 16)}, {vr(128 + 64 * f + 4 * ks)}, {vr(HB(tt, ks))}, {c}")
                if ks == 10:
                    a.merge(sk)
                    a.L(lab)
                if tt == 0 and ks < 2:
                    hload(20 + ks)
                if tt == 1 and 2 <= ks < 10:
                    pwrite(0, ks - 2)
        for n in range(8):
            pwrite(1, n)
        for i in range(4):
            a(f"v_and_b32 v{121 + 2 * i}, 0xffff0000, v{120 + 2 * i}")
            a(f"v_lshlrev_b32 v{120 + 2 * i}, 16, v{120 + 2 * i}")
            a(f"v_lshlrev_b32 v{128 + 2 * i}, 16, v{12 + i}")
            a(f"v_and_b32 v{129 + 2 * i}, 0xffff0000, v{12 + i}")
        a(f"""
        s_lshl_b32 {T0}, {sGX}, 18
        s_lshl_b32 {T1}, {sTQ}, 16
        s_add_u32 {T0}, {T0}, {T1}
        s_lshl_b32 {T1}, {sW}, 13
        s_add_u32 {T0}, {T0}, {T1}
        s_lshl_b32 {T1}, {sCG}, 7
        s_add_u32 {T0}, {T0}, {T1}
        """)
        a.wait(lg=0)
        a("s_barrier")
        self.stamp("edone")
        for src in range(8):
            ad = "v10" if src < 4 else "v11"
            a(f"ds_read_b128 {vr(16 + 8 * src)}, {ad} offset:{(src & 3) * RED_W}")
            a(f"ds_read_b128 {vr(20 + 8 * src)}, {ad} offset:{(src & 3) * RED_W + 16}")
        for src in range(1, 8):
            for k in range(4):
                a(f"v_pk_add_f32 {vr(16 + 2 * k, 2)}, {vr(16 + 2 * k, 2)}, {vr(16 + 8 * src + 2 * k, 2)}")
        for k in range(4):
            a(f"v_pk_fma_f32 {vr(16 + 2 * k, 2)}, {vr(16 + 2 * k, 2)}, {vr(120 + 2 * k, 2)}, {vr(128 + 2 * k, 2)}")
        for k in range(4):
            a(f"v_cvt_pk_bf16_f32 v{24 + k}, v{16 + 2 * k}, v{17 + 2 * k}")
        a(f"buffer_store_dwordx4 v[24:27], v4, {sOUT}, {T0} offen")

    def finish(self):
        a = self.a
        a(f"s_or_b32 {T0}, s2, {sW}")
        a(f"s_cmp_lg_u32 {T0}, 0")
        a("s_cbranch_scc1 L_fin")
        a(f"v_mov_b32 v1, {sTAG}")
        self.flag_store("v1", "v6", "0", "sc1")
        a.L("L_fin")
        if self.stamps:
            a.wait(vm=0)
            self.stamp("end")
            a(f"""
            s_lshl_b32 {T0}, s2, 3
            s_add_u32 {T0}, {T0}, {sW}
            s_lshl_b32 {T0}, {T0}, 7
            s_add_u32 {T0}, {T0}, {WS_STAMP}
            """)
            for i in range(16):
                a(f"v_mov_b32 v{16 + i}, s{STAMP0 + i}")
            a("v_mov_b32 v32, s100")
            a("s_mov_b64 exec, 1")
            for i in range(4):
                a(f"buffer_store_dwordx4 {vr(16 + 4 * i)}, v6, {sWS}, {T0} offen offset:{16 * i}")
            a(f"buffer_store_dword v32, v6, {sWS}, {T0} offen offset:64")
            if "ampb" in self.opt:
                a(f"s_cmp_lg_u32 s2, 100")
                a("s_cbranch_scc1 L_end")
                a(f"s_cmp_lg_u32 {sW}, 0")
                a("s_cbranch_scc1 L_end")
                a(f"s_sub_u32 {T0}, s{STAMP0 + self.opt['ampb']}, s{STAMP0 + self.opt['ampa']}")
                a(f"s_mul_i32 {T0}, {T0}, 10")
                a(f"s_min_u32 {T0}, {T0}, 200000")
                a.L("L_amp")
                a("s_memrealtime s[82:83]")
                a.wait(lg=0)
                a(f"s_sub_u32 {T1}, s82, s{STAMP0 + self.nstamp - 1}")
                a(f"s_cmp_lt_u32 {T1}, {T0}")
                a("s_cbranch_scc1 L_amp")
            if self.opt.get("dbg"):
                a(f"s_cmp_lg_u32 s2, {self.opt['dbg'] - 1}")
                a("s_cbranch_scc1 L_end")
                a(f"s_cmp_lg_u32 {sW}, 0")
                a("s_cbranch_scc1 L_end")
                self.srd(sC, 22, 256)
                a("s_memrealtime s[82:83]")
                for i in range(1, 16):
                    a(f"v_subrev_u32 v{16 + i}, s{STAMP0}, v{16 + i}")
                a.wait(lg=0)
                a("s_sub_u32 s82, s82, s100")
                a("v_mov_b32 v16, s82")
                for i in range(4):
                    a(f"buffer_store_dwordx4 {vr(16 + 4 * i)}, v6, {sC}, 0 offen offset:{16 * i}")
        a.L("L_end")
        a("s_endpgm")
        if hasattr(self, "slow_state"):
            self.slow_path()
        n = a.fix_hazards()
        return n


HEADER = """; Fused adaLN-conditioned block (LN+modulate -> MHA -> gated residual -> LN+modulate -> ReLU FFN -> gated residual)
; Kernarg: 0 A_x | 8 A_wqkv | 16 A_wo | 24 B_x | 32 B_w1 | 40 B_w2 | 48 c | 56 w_mod | 64 out | 72 debug | 80 ws
; @launch grid=(256,1,1) block=(512,1,1) lds=163840
.amdgcn_target "amdgcn-amd-amdhsa--gfx950"
.text
.globl {name}_kernel
.p2align 8
.type {name}_kernel,@function
{name}_kernel:
"""
FOOTER = """
    s_endpgm
L_code_end:
.p2align 8
.fill {pad}, 4, 0xbf810000
.section .rodata,"a"
.p2align 6
.amdhsa_kernel {name}_kernel
  .amdhsa_next_free_vgpr 256
  .amdhsa_next_free_sgpr 102
  .amdhsa_accum_offset 256
  .amdhsa_group_segment_fixed_size 0
  .amdhsa_kernarg_size 88
  .amdhsa_user_sgpr_count 2
  .amdhsa_user_sgpr_kernarg_segment_ptr 1
  .amdhsa_system_sgpr_workgroup_id_x 1
.end_amdhsa_kernel
"""


def generate(**kw):
    g = Gen(**kw)
    n = g.build()
    txt = HEADER.format(name=NAME) + g.a.text() + FOOTER.format(name=NAME, pad=64)
    return txt, g


if __name__ == "__main__":
    import argparse
    ap = argparse.ArgumentParser()
    ap.add_argument("-o", default=f"cdna_kernels/{NAME}.s")
    ap.add_argument("--stamps", action="store_true")
    ap.add_argument("--stop", default=None)
    ap.add_argument("--safe", action="store_true")
    ap.add_argument("--slow", action="store_true")
    ap.add_argument("--opt", default="")
    args = ap.parse_args()
    kw = {}
    for o in filter(None, args.opt.split(",")):
        k, v = o.split("=")
        kw[k] = int(v)
    txt, g = generate(stamps=args.stamps, stop=args.stop, force_safe=args.safe, force_slow=args.slow, **kw)
    open(args.o, "w").write(txt)
    print("wrote", args.o, len(txt), "bytes;", len(g.a.ins), "lines; stamps:", g.stamp_names)
```

```python
import sys, os, math, struct, re
sys.path.insert(0, os.path.dirname(os.path.abspath(__file__)))
from asmlib import Asm

NAME = "adaLN_cond__softmax_full_mha__dense_activation_relu__prompt"

WS_EPOCH = 0
WS_MODG = 0x1000
WS_STATG = 0x4000
WS_PFLAG = 0xC000
WS_MODP = 0x360000
WS_MODL = 0x3C0000
WS_KVFLAG = 0x10000
WS_WOF = 0x20000
WS_W1F = 0xA0000
WS_W2F = 0x200000
WS_KV = 0x400000
WS_GRP = 0x800000
G_O, G_X1, G_HID = 0, 0x40000, 0x80000
G_ST = 0x12C000
G_OFLAG, G_X1FLAG, G_HFLAG = 0x13C000, 0x13C400, 0x13C800
WS_STAMP = 0x1800000
WS_WQF = 0x1900000
WS_UBG = 0x1A80000
WS_WFLAG = 0x1AB0000
WS_SIZE = 0x1B00000

KVS = 2064
L_WM = 0x0
L_WT = 0x3000
L_PT = 0x5000
L_PFS = 0x4400
L_X = 0x8400
L_W = 0x18400
L_PF = 0x20400
L_SC = 0x24400
L_P = 0x24800
L_G = 0x24C00
L_UBP = 0x26C00
L_ST2 = 0x27C00
L_GS = L_G
L_SP = L_G + 2304
L_SF = L_G + 6400
L_RES = L_PF
L_WM2 = 48 * KVS
L_O = 0x0
L_X1 = 0x10000
RED_ROW = 272
RED_W = 64 * RED_ROW
LDS_SIZE = 163840

sW = "s3"
sX, sWQ, sWM, sC, sWS, sOUT, sPF, sCODE = ("s[28:31]", "s[32:35]", "s[36:39]", "s[40:43]", "s[44:47]",
                                           "s[48:51]", "s[52:55]", "s[56:59]")
sGX, sJ, sTAG, sTQ, sCG, sGRP, sLOC, sSPIN = ("s60", "s61", "s62", "s63", "s64", "s65", "s66", "s67")
sKVB, sB0, sB1, sTASK, sPFD, sU0, sU1, sW2B = ("s68", "s69", "s70", "s71", "s72", "s73", "s74", "s75")
T0, T1, T2, T3, T4, T5 = ("s76", "s77", "s78", "s79", "s80", "s81")
sKS, sM2 = "s26", "s27"
sTASK2 = "s40"
pOST, pOFL, pOPL, pSRC, pW12, pYS0, pYS1, pSTS, pYFL, pYPL, pSTL, pHS0, pHS1, pHFL, pHPL, pHLD = (f"s{i}" for i in range(4, 20))
pOUT, pNV, pRES, pW2P, pW2S = "s32", "s33", "s34", "s35", "s36"
STAMP0 = 84

QSCALE = 0.25 * math.log2(math.e)
LOG2E = math.log2(math.e)


def f2u(x):
    return "0x%08x" % struct.unpack("<I", struct.pack("<f", x))[0]


def vr(b, n=4):
    return f"v[{b}:{b + n - 1}]"


def unpk(text):
    out = []
    for ln in text.split("\n"):
        t = ln.strip()
        m = re.match(r"v_pk_(add|mul|fma)_f32 (.*)$", t)
        if not m:
            out.append(ln)
            continue
        regs = [int(x) for x in re.findall(r"v\[(\d+):\d+\]", m.group(2))]
        for k in range(2):
            out.append(f"v_{m.group(1)}_f32 " + ", ".join(f"v{r + k}" for r in regs))
    return "\n".join(out)


class Gen:
    def __init__(self, stamps=False, stop=None, force_safe=False, force_slow=False, sgrp=0, **opt):
        self.sgrp = sgrp
        self.opt = opt
        self.a = Asm()
        self.stamps = stamps
        self.stop = stop
        self.force_safe = force_safe
        self.force_slow = force_slow
        self.nstamp = 0
        self.stamp_names = []

    def stamp(self, name, grp=0):
        if not self.stamps:
            return
        if name not in ("entry", "end") and grp != self.sgrp and not (isinstance(grp, tuple) and self.sgrp in grp):
            return
        a = self.a
        if name in self.stamp_names:
            a("s_memtime s[82:83]" if self.opt.get("cyc") else "s_memrealtime s[82:83]")
            a.wait(lg=0)
            a(f"s_mov_b32 s{STAMP0 + self.stamp_names.index(name)}, s82")
            return
        assert self.nstamp < 16
        a("s_memtime s[82:83]" if self.opt.get("cyc") else "s_memrealtime s[82:83]")
        a.wait(lg=0)
        a(f"s_mov_b32 s{STAMP0 + self.nstamp}, s82")
        self.nstamp += 1
        self.stamp_names.append(name)

    def srd(self, dst, lo, size):
        d = int(dst[2:].split(":")[0])
        self.a(f"""
        s_mov_b32 s{d}, s{lo}
        s_mov_b32 s{d + 1}, s{lo + 1}
        s_mov_b32 s{d + 2}, {size}
        s_mov_b32 s{d + 3}, 0x20000""")

    def dma(self, vaddr, srd, soff, off=0, sc=""):
        o = f" offset:{off}" if off else ""
        return self.a(f"buffer_load_dwordx4 {vaddr}, {srd}, {soff} offen{o} {sc} lds")

    def tagcmp(self, cmps):
        a = self.a
        a(f"v_cmp_ne_u32 vcc, {sTAG}, {cmps[0]}")
        for c in cmps[1:]:
            if isinstance(c, tuple):
                a(f"v_xor_b32 v1, {sTAG}, {c[1]}")
                a(f"v_cmp_lt_u32 s[82:83], 15, v1")
            else:
                a(f"v_cmp_ne_u32 s[82:83], {sTAG}, {c}")
            a("s_or_b64 vcc, vcc, s[82:83]")

    def poll(self, load, cmps, sleep=0):
        a = self.a
        lab, done = a.newlabel("L_poll"), a.newlabel("L_polld")
        a(f"s_mov_b32 {sSPIN}, 0x40000")
        a.L(lab)
        if sleep:
            a(f"s_sleep {sleep}")
        a(load)
        a(f"s_sub_u32 {sSPIN}, {sSPIN}, 1")
        a(f"s_cbranch_scc1 {done}")
        a.wait(vm=0)
        self.tagcmp(cmps)
        a(f"s_cbranch_vccnz {lab}")
        a.L(done)
        a.wait(vm=0)

    def pub(self, fn):
        a = self.a
        ls, ld = a.newlabel("L_safe"), a.newlabel("L_pubd")
        a(f"s_cmp_eq_u32 {sLOC}, 0")
        a(f"s_cbranch_scc1 {ls}")
        s0 = a.snap()
        fn("")
        a(f"s_branch {ld}")
        s1 = a.snap()
        a.restore(s0)
        a.L(ls)
        fn("sc1")
        a.merge(s1)
        a.L(ld)

    def flag_store(self, vtmp, voff, soff, sc):
        a = self.a
        a(f"s_mov_b64 exec, 1")
        a(f"buffer_store_dword {vtmp}, {voff}, {sWS}, {soff} offen {sc}")
        a(f"s_mov_b64 exec, -1")

    def check(self, h, load, cmps, sleep=0):
        a = self.a
        ok = a.newlabel("L_ok")
        a.waith(h)
        self.tagcmp(cmps)
        a(f"s_cbranch_vccz {ok}")
        s0 = a.snap()
        self.poll(load, cmps, sleep)
        a.merge(s0)
        a.L(ok)

    def build(self):
        a = self.a
        o = self.opt
        NR = 4
        a("s_cmp_ge_u32 s2, 256")
        a("s_cbranch_scc1 L_end")
        if self.stamps:
            a("s_memrealtime s[100:101]")
            self.stamp("entry")
        a(f"""
        s_load_dwordx16 s[4:19], s[0:1], 0
        s_load_dwordx2 s[24:25], s[0:1], 80
        s_and_b32 {sGX}, s2, 7
        s_lshr_b32 {sJ}, s2, 3
        v_readfirstlane_b32 s3, v0
        v_lshrrev_b32 v1, 3, v0
        v_lshlrev_b32 v6, 4, v0
        v_mul_u32_u24 v3, 3072, v1
        v_and_b32 v2, 0x70, v6
        s_lshl_b32 {T4}, {sGX}, 18
        s_lshl_b32 {T1}, {sJ}, 13
        s_add_u32 {T2}, {T4}, {T1}
        v_add_u32 v5, {T2}, v6
        s_lshr_b32 s3, s3, 6
        s_cmp_ge_u32 {sJ}, 24
        s_cbranch_scc1 L_e1
        s_mul_i32 {T0}, {sGX}, {64 * 3072}
        s_lshl_b32 {T1}, {sJ}, 7
        s_add_u32 {T0}, {T0}, {T1}
        v_add3_u32 v10, v3, v2, {T0}
        s_lshl_b32 {T1}, {sW}, 10
        s_add_u32 m0, {T1}, {L_WT}
        """)
        HM = {}
        s0 = a.snap()
        a.wait(lg=0)
        hR0 = a(f"global_load_dwordx4 v[20:23], v5, s[4:5] nt")
        HM["wt"] = a(f"global_load_lds_dwordx4 v10, s[6:7] nt")
        a("s_branch L_e3")
        s1 = a.snap()
        a.restore(s0)
        a.L("L_e1")
        a(f"""
        s_lshl2_add_u32 {T0}, {sJ}, {sW}
        s_bfe_u32 {T3}, {T0}, 0x40001
        s_and_b32 {T0}, {T0}, 1                ; vec
        s_lshl1_add_u32 {sU1}, {sGX}, {T0}
        s_lshl4_add_u32 {sU1}, {sU1}, {T3}
        s_lshl_b32 {sU1}, {sU1}, 9
        s_lshl3_add_u32 {T0}, {T0}, {sGX}
        s_lshl_b32 {T0}, {T0}, 7
        s_lshl_b32 {T1}, {T3}, 2
        s_sub_u32 {T1}, {T1}, {sW}
        s_mul_i32 {T1}, {T1}, {8 * 6144}
        s_add_u32 {T0}, {T0}, {T1}
        v_lshl_add_u32 v9, v3, 1, v2
        s_lshl_b32 {T3}, {T3}, 6
        v_and_b32 v13, 31, v0
        v_add_u32 v9, {T0}, v9
        v_lshl_add_u32 v13, v13, 1, {T3}       ; c offset
        s_lshl_b32 {T1}, {sW}, 12
        s_add_u32 m0, {T1}, {L_WM}
        s_cmp_ge_u32 {sW}, 4
        """)
        a.wait(lg=0)
        a("s_cbranch_scc1 L_e2")
        s2 = a.snap()
        a(f"global_load_ushort v16, v13, s[16:17]")
        for i in range(4):
            HM["wm0"] = a(f"global_load_lds_dwordx4 v9, s[18:19] nt")
            if i < 3:
                a(f"s_add_u32 m0, {T1}, {L_WM + (i + 1) * 1024}")
                a(f"v_add_u32 v9, {8 * 6144}, v9")
        a(f"""
        v_and_b32 v1, 3, v0
        s_add_u32 {T0}, {sU1}, {WS_MODL}
        v_lshl_add_u32 v1, v1, 7, {T0}
        global_load_dword v18, v1, s[24:25] sc1
        """)
        a.merge(s2)
        a.L("L_e2")
        hR1 = a(f"global_load_dwordx4 v[20:23], v5, s[4:5] nt")
        a.merge(s1)
        a.L("L_e3")
        self.stamp("issued", 4)
        hE = a(f"s_load_dword {sTAG}, s[24:25], 0")
        a(f"""
        s_load_dwordx4 s[20:23], s[0:1], 64
        s_getpc_b64 s[56:57]
        L_pc:
        v_and_b32 v0, 63, v0
        v_and_b32 v8, 15, v0                ; n
        s_and_b32 s57, s57, 0xffff
        s_mov_b32 s58, L_code_end-L_pc
        s_mov_b32 s59, 0x20000
        """)
        vL16, vG4, vN = "v6", "v7", "v8"

        def code_pf():
            a(f"""
            v_lshlrev_b32 v1, 7, v8
            s_lshl_b32 {T1}, {sJ}, 11
            buffer_load_dword v19, v1, {sCODE}, {T1} offen
            """)
        self.cond(f"s_cmp_lg_u32 {sW}, 7", code_pf)()
        self.srd(sWS, 24, WS_SIZE)
        a(f"""
        v_lshlrev_b32 v6, 4, v0
        v_lshrrev_b32 v7, 4, v0             ; g4
        """)

        def flag_touch():
            a(f"""
            s_lshl_b32 {T0}, s2, 7
            s_add_u32 {T0}, {T0}, {WS_KVFLAG}
            s_mov_b64 exec, 1
            buffer_load_dword v18, v6, {sWS}, {T0} offen sc1
            s_mov_b64 exec, -1
            """)
        self.cond(f"s_cmp_lg_u32 {sW}, 6", flag_touch)()
        self.srd(sX, 4, 2048 * 1024)
        XF = lambda T, s: 128 + (s * 2 + T) * 4
        a(f"""
        v_lshrrev_b32 v1, 3, v0
        v_and_b32 v2, 7, v0
        v_xor_b32 v2, v2, v7
        v_lshlrev_b32 v1, 10, v1
        v_lshl_add_u32 v11, v2, 4, v1
        v_xor_b32 v12, 64, v11              ; (rh=1)
        s_lshl_b32 {T1}, {sW}, 15
        s_add_u32 {T4}, {T4}, {T1}
        s_lshl_b32 {T5}, {sW}, 13
        s_add_u32 {T5}, {T5}, {L_X}
        v_lshrrev_b32 v1, 1, {vN}
        v_xor_b32 v1, v1, {vG4}
        v_lshlrev_b32 v1, 4, v1
        v_lshl_add_u32 v1, {vN}, 7, v1
        v_add_u32 v14, {T5}, v1
        v_xor_b32 v15, 64, v14
        s_lshr_b32 {sTQ}, {sJ}, 3
        s_and_b32 {sCG}, {sJ}, 7
        s_lshl_b32 {sGRP}, {sGX}, 21
        s_add_u32 {sGRP}, {sGRP}, {WS_GRP}
        s_lshr_b32 {sM2}, {T2}, 6
        s_add_u32 {sM2}, {sM2}, {WS_STATG}
        """)

        def mod_addr(r, lds=0):
            a(f"""
            v_lshrrev_b32 v{r + 1}, 5, v0
            v_bfe_u32 v{r + 2}, v0, 2, 2
            v_lshl_add_u32 v{r + 2}, v{r + 1}, 3, v{r + 2}
            s_lshl_b32 {T0}, {sW}, 12
            s_add_u32 {T0}, {T0}, {lds}
            v_lshl_add_u32 v{r + 2}, v{r + 2}, 7, {T0}
            v_and_b32 v{r}, 1, v7
            v_lshl_add_u32 v{r + 2}, v{r}, 5, v{r + 2}
            v_and_b32 v{r}, 3, v0
            v_lshl_add_u32 v{r + 2}, v{r}, 3, v{r + 2}
            s_lshl_b32 {T0}, {sW}, 7
            s_add_u32 {T0}, {T0}, {L_SC}
            v_lshl_add_u32 v{r}, v0, 1, {T0}
            v_lshl_add_u32 v{r + 1}, v{r + 1}, 4, {T0}
            """)

        def mod_unit(r, c, R, h, local, part=None):
          if part in (None, 0):
            a(f"""
            v_lshlrev_b32 v{c}, 16, v{c}
            v_mul_f32 v{c + 1}, {f2u(-LOG2E)}, v{c}
            v_exp_f32 v{c + 1}, v{c + 1}
            v_add_f32 v{c + 1}, 1.0, v{c + 1}
            v_rcp_f32 v{c + 1}, v{c + 1}
            v_mul_f32 v{c}, v{c}, v{c + 1}
            v_cvt_pk_bf16_f32 v{c}, v{c}, v{c}
            ds_write_b16 v{r}, v{c}
            ds_read_b128 {vr(R)}, v{r + 1}
            ds_read_b128 {vr(R + 4)}, v{r + 1} offset:32
            """)
          if part in (None, 1):
            a.waith(h)
            for i in range(2):
                for f in range(2):
                    q = R + 8 + (i * 2 + f) * 4
                    a(f"ds_read_b64_tr_b16 {vr(q, 2)}, v{r + 2} offset:{L_WM + 2048 * i + 64 * f}")
                    a(f"ds_read_b64_tr_b16 {vr(q + 2, 2)}, v{r + 2} offset:{L_WM + 2048 * i + 64 * f + 512}")
          if part in (None, 2):
            for i in range(2):
                for f in range(2):
                    cc = "0" if i == 0 else vr(R + 24 + 16 * f, 16)
                    a(f"v_mfma_f32_32x32x16_bf16 {vr(R + 24 + 16 * f, 16)}, {vr(R + 4 * i)}, {vr(R + 8 + (i * 2 + f) * 4)}, {cc}")
          if part in (None, 3):
            a(f"""
            s_add_u32 {T1}, {sU1}, {WS_MODL}
            s_add_u32 {T0}, {sU1}, {WS_MODP}
            v_mov_b32 v{c + 1}, {sTAG}
            s_mov_b32 vcc_lo, 0
            s_mov_b32 vcc_hi, -1
            v_cndmask_b32 v{c}, v{R + 24}, v{R + 40}, vcc
            """)
            if local:
                a(f"buffer_store_dwordx2 {vr(c, 2)}, v{r + 3}, {sWS}, {T1} offen")
            a(f"buffer_store_dwordx2 {vr(c, 2)}, v{r + 3}, {sWS}, {T0} offen sc1")

        only_m1 = lambda fn: self.cond(f"s_cmp_lt_u32 {sJ}, 24", self.cond(f"s_cmp_ge_u32 {sW}, 4", fn))()
        only_m1(lambda: mod_addr(100))
        a(f"""
        s_lshl_b32 {T2}, {sW}, 10
        s_add_u32 {T2}, {T2}, {L_G}
        s_and_b32 {T1}, {sW}, 1
        s_lshr_b32 {T3}, {sW}, 1
        s_lshl2_add_u32 {T1}, {T1}, {T3}    ; vec*4 + (w>>1)
        s_lshl3_add_u32 {T3}, {sGX}, {T1}
        s_lshl_b32 {T3}, {T3}, 11
        s_add_u32 {T3}, {T3}, {WS_MODL}
        s_lshl_b32 {T1}, {T1}, 9
        s_add_u32 {T1}, {T1}, {L_PT}
        v_lshlrev_b32 v103, 3, v0
        v_add_u32 v4, {T1}, v103
        v_and_b32 v1, 31, v0
        v_lshrrev_b32 v2, 5, v0
        v_xor_b32 v2, 1, v2
        v_lshl_add_u32 v1, v2, 8, v1
        v_lshlrev_b32 v13, 3, v1            ; (l&31 + (l<32 ? 256:0))*8
        v_cvt_f32_u32 v36, v2
        v_add_u32 v5, {L_PT}, v13
        s_lshr_b32 {T0}, {sW}, 2            ; sp
        s_and_b32 {T1}, {sW}, 3
        s_lshl_b32 {sU0}, {T0}, 12
        s_lshl_b32 {sB0}, {T1}, 5
        s_add_u32 {sU0}, {sU0}, {sB0}
        s_add_u32 {sU0}, {sU0}, {L_WT}
        v_lshl_add_u32 v3, v7, 10, {sU0}
        v_bfe_u32 v1, v0, 2, 2
        v_lshl_add_u32 v3, v1, 7, v3
        v_and_b32 v1, 3, v0
        v_lshl_add_u32 v3, v1, 3, v3
        v_add_u32 v104, {T2}, v103
        v_lshl_add_u32 v105, v0, 2, {T2}
        s_lshl_b32 {sU0}, {T0}, 6
        s_add_u32 {sB0}, {T2}, {sU0}
        s_add_u32 {sU0}, {sB0}, {sU0}
        v_lshl_add_u32 v106, v7, 5, {sU0}
        v_and_b32 v2, 1, v0
        v_lshlrev_b32 v2, 7, v2
        v_lshl_add_u32 v2, v7, 4, v2
        v_add_u32 v107, {sB0}, v2
        s_lshl2_add_u32 {sU0}, {sCG}, {T1}    ; head
        s_mul_i32 {sB0}, {T0}, 3
        s_add_u32 {sB0}, {sB0}, {sTQ}         ; sp*3 + p
        s_lshl3_add_u32 {sU0}, {sU0}, {sGX}
        s_mul_i32 {sB1}, {sU0}, 6
        s_add_u32 {sB1}, {sB1}, {sB0}
        s_lshl_b32 {sB0}, {sB1}, 10
        s_add_u32 {sB0}, {sB0}, {WS_WQF}
        s_lshl_b32 {sB1}, {sB1}, 7
        s_add_u32 {sB1}, {sB1}, {WS_UBG}
        """)
        a.waith(hE)
        a(f"s_mul_i32 {sTAG}, {sTAG}, 0x41c64e6d")
        a(f"s_add_u32 {sTAG}, {sTAG}, 0x3c6ef35f")
        only_m1(lambda: mod_unit(100, 16, 40, HM["wm0"], True))
        self.stamp("modpub", (3, 4))
        hx, hr = {}, {}
        nis, nrd, half = [0], [0], [0]

        def x_issue(n=1):
            for _ in range(n):
                q = nis[0]
                if q >= 16:
                    return
                assert q - NR < nrd[0]
                kk, T = q >> 1, q & 1
                if q - NR in hr:
                    a.waith(hr[q - NR])
                for rh in range(2):
                    a(f"s_add_u32 m0, {T5}, {(q % NR) * 2048 + rh * 1024}")
                    a(f"s_add_u32 {T1}, {T4}, {(16 * T + 8 * rh) * 1024 + kk * 128}")
                    hx[q] = self.dma("v11" if rh == 0 else "v12", sX, T1)
                nis[0] += 1

        def x_piece():
            q, rh = nis[0], half[0]
            kk, T = q >> 1, q & 1
            if rh == 0:
                assert q - NR < nrd[0]
                if q - NR in hr:
                    a.waith(hr[q - NR])
            a(f"s_add_u32 m0, {T5}, {(q % NR) * 2048 + rh * 1024}")
            a(f"s_add_u32 {sKVB}, {T4}, {(16 * T + 8 * rh) * 1024 + kk * 128}")
            hx[q] = self.dma("v11" if rh == 0 else "v12", sX, sKVB)
            half[0] ^= 1
            if rh:
                nis[0] += 1

        def x_read(n=1):
            for _ in range(n):
                q = nrd[0]
                if q >= nis[0]:
                    return
                kk, T = q >> 1, q & 1
                a.waith(hx[q])
                a(f"ds_read_b128 {vr(XF(T, 2 * kk))}, v14 offset:{(q % NR) * 2048}")
                hr[q] = a(f"ds_read_b128 {vr(XF(T, 2 * kk + 1))}, v15 offset:{(q % NR) * 2048}")
                nrd[0] += 1

        def m2_loads():
            a(f"""
            s_lshl3_add_u32 {T0}, {sCG}, {sW}
            s_lshl_b32 {sU1}, {sGX}, 6
            s_add_u32 {sU1}, {sU1}, {T0}
            s_lshl_b32 {sU1}, {sU1}, 9
            s_add_u32 {sU1}, {sU1}, 0x20000
            s_lshr_b32 {T1}, {T0}, 4
            s_lshl3_add_u32 {T1}, {T1}, {sGX}
            s_lshl_b32 {T1}, {T1}, 7
            s_and_b32 {T0}, {T0}, 15
            s_mul_i32 {T2}, {T0}, {32 * 6144}
            s_add_u32 {T1}, {T1}, {T2}
            s_add_u32 {T1}, {T1}, 2048
            s_lshl_b32 {T0}, {T0}, 6
            v_and_b32 v96, 31, v0
            v_lshl_add_u32 v96, v96, 1, {T0}
            global_load_ushort v136, v96, s[16:17]
            v_lshrrev_b32 v96, 3, v0
            v_mul_u32_u24 v96, 6144, v96
            v_and_b32 v97, 0x70, {vL16}
            v_add3_u32 v98, v96, v97, {T1}
            s_lshl_b32 {T1}, {sW}, 12
            """)
            for i in range(4):
                a(f"s_add_u32 m0, {T1}, {L_WM2 + i * 1024}")
                if i:
                    a(f"v_add_u32 v98, {8 * 6144}, v98")
                HM["wm2"] = a(f"global_load_lds_dwordx4 v98, s[18:19] nt")

            mod_addr(100, L_WM2)
        self.m2_loads = m2_loads
        self.m2_unit = lambda part: mod_unit(100, 136, 140, HM["wm2"], False, part)

        a.waith(hR0)
        self.stamp("row", 4)
        x_issue(o.get("x0", 4))
        for _ in range(o.get("xa", 1)):
            x_read()
            x_issue()
        x_read(NR)
        gld = f"""buffer_load_dwordx4 v[24:27], {vL16}, {sWS}, {T3} offen sc1
        buffer_load_dwordx4 v[28:31], {vL16}, {sWS}, {T3} offen offset:1024 sc1"""
        gc = ["v25", "v27", "v29", "v31"]

        def gather():
            lab, done = a.newlabel("L_poll"), a.newlabel("L_polld")
            a(f"s_mov_b32 {sSPIN}, 0")
            a.L(lab)
            a(gld)
            a(f"""
            s_add_u32 {sSPIN}, {sSPIN}, 1
            s_cmp_eq_u32 {sSPIN}, 12
            s_cselect_b32 {T0}, {WS_MODL - WS_MODP}, 0
            s_sub_u32 {T3}, {T3}, {T0}
            s_cmp_ge_u32 {sSPIN}, 0x40000
            s_cbranch_scc1 {done}
            """)
            a.wait(vm=0)
            self.tagcmp(gc)
            a(f"s_cbranch_vccnz {lab}")
            a.L(done)
            a.wait(vm=0)
            a("""
            v_add_f32 v24, v24, v28
            v_add_f32 v25, v26, v30
            ds_write_b64 v4, v[24:25]
            """)

        def w_scale():
            for i in range(4):
                a(f"ds_read2_b64 {vr(40 + 4 * i)}, v5 offset0:{64 * i} offset1:{64 * i + 32}")
            a(f"""
            ds_read_b64_tr_b16 v[56:57], v3
            ds_read_b64_tr_b16 v[58:59], v3 offset:512
            v_pk_add_f32 v[40:41], v[40:41], v[42:43]
            v_pk_add_f32 v[44:45], v[44:45], v[46:47]
            v_pk_add_f32 v[48:49], v[48:49], v[50:51]
            v_pk_add_f32 v[52:53], v[52:53], v[54:55]
            v_pk_add_f32 v[40:41], v[40:41], v[44:45]
            v_pk_add_f32 v[48:49], v[48:49], v[52:53]
            v_pk_add_f32 v[40:41], v[40:41], v[48:49]
            v_cvt_pk_bf16_f32 v16, v40, v41
            v_lshlrev_b32 v18, 16, v16
            v_and_b32 v19, 0xffff0000, v16
            v_add_f32 v18, v18, v36
            v_add_f32 v19, v19, v36
            v_cvt_pk_bf16_f32 v16, v18, v19
            v_and_b32 v18, 0xffff, v16
            v_and_b32 v19, 0xffff0000, v16
            ds_write_b64 v104, v[18:19]
            ds_write_b32 v105, v16 offset:512
            ds_read_b128 v[40:43], v106
            ds_read_b128 v[44:47], v106 offset:16
            ds_read_b128 v[60:63], v107 offset:512
            """)
            self.scale_frag(56, 24, 32, 20, 0)
            a(f"buffer_store_dwordx4 v[32:35], {vL16}, {sWS}, {sB0} offen sc1")
            a("v_mfma_f32_16x16x32_bf16 v[48:51], v[60:63], v[56:59], 0")
            a("s_mov_b64 exec, 0xffff")
            HM["ws"] = a(f"buffer_store_dwordx2 v[48:49], v103, {sWS}, {sB1} offen sc1")
            a("s_mov_b64 exec, -1")

        a(f"s_cmp_ge_u32 {sJ}, 24")
        a("s_cbranch_scc1 L_m2")
        sA = a.snap()
        gather()
        self.stamp("modgot", (0, 3))
        a.wait(lg=0)
        a("s_barrier")
        w_scale()
        a.merge(sA)
        a.L("L_m2")
        self.stamp("wstore", 3)
        x_issue(o.get("x2", 2))
        self.ln1_stats()
        self.stamp("stats", 3)
        a.waith(HM["ws"])
        a.wait(lg=0)
        a("s_barrier")

        def w_flag():
            a(f"""
            s_lshl_b32 {T0}, s2, 7
            s_add_u32 {T0}, {T0}, {WS_WFLAG}
            v_mov_b32 v16, {sTAG}
            v_mov_b32 v17, {sTAG}
            s_mov_b64 exec, 0xffff
            buffer_store_dwordx2 v[16:17], v103, {sWS}, {T0} offen sc1
            s_mov_b64 exec, -1
            """)

        def stats_pub():
            a(f"""
            v_add_u32 v1, {L_P}, {vL16}
            ds_read_b128 v[16:19], v1
            s_mov_b64 exec, 0xff
            buffer_store_dwordx4 v[16:19], {vL16}, {sWS}, {sM2} offen sc1
            s_mov_b64 exec, -1
            """)
        self.cond(f"s_cmp_lg_u32 {sW}, 0", lambda: (w_flag(), stats_pub()))()
        self.stamp("wflag", 3)
        XL = o.get("xl", 2)
        while nis[0] < 16 - XL:
            if nis[0] - nrd[0] >= NR:
                x_read()
            x_issue()
        a(f"""
        s_lshl_b32 {T3}, {sGX}, 12
        s_lshl_b32 {T1}, {sW}, 9
        s_add_u32 {T3}, {T3}, {T1}
        s_add_u32 {T3}, {T3}, {WS_STATG}
        v_and_b32 v4, 0x1f0, {vL16}
        s_lshl4_add_u32 {sKS}, {sJ}, {sW}
        s_mul_i32 {sB0}, {sKS}, 3072
        s_add_u32 {sB0}, {sB0}, {WS_WQF}
        s_mul_i32 {sB1}, {sKS}, 384
        s_add_u32 {sB1}, {sB1}, {WS_UBG}
        s_lshr_b32 {T0}, {sJ}, 2
        s_lshr_b32 {T1}, {sW}, 1
        s_lshl3_add_u32 {sKS}, {T0}, {T1}
        s_lshl_b32 {sKS}, {sKS}, 7
        s_add_u32 {sKS}, {sKS}, {WS_WFLAG}
        s_mul_i32 {sU0}, {sW}, 3072
        v_and_b32 v3, 3, v0
        v_min_u32 v3, 2, v3
        v_bfe_u32 v1, v0, 2, 1
        v_lshlrev_b32 v1, 9, v1
        v_lshl_add_u32 v3, v3, 13, v1
        """)
        wfld = f"buffer_load_dword v16, v3, {sWS}, {sKS} offen sc1"
        hF = a(wfld)
        x_read(NR)
        self.stamp("xdone", (0, 3))
        self.check(hF, wfld, ["v16"])
        self.stamp("wfgot", 3)
        hw = {}

        def wdma(sp, ps):
            a(f"s_add_u32 m0, {sU0}, {L_W + sp * 8 * 3072}")
            for p in ps:
                hw[sp, p] = self.dma(vL16, sWS, sB0 if sp == 0 else sB1, off=p * 1024, sc="sc1")
        wdma(0, (1, 2))
        a(f"buffer_load_dwordx2 v[16:17], v103, {sWS}, {sB1} offen sc1")
        a(f"buffer_load_dwordx2 v[18:19], v103, {sWS}, {sB1} offen offset:3072 sc1")
        statld = f"buffer_load_dwordx4 v[120:123], v4, {sWS}, {T3} offen sc1"
        hS = a(statld)
        a(f"s_add_u32 {sB1}, {sB0}, {8 * 3072}")
        a("s_barrier")
        wdma(1, (1, 2))
        self.pf_issue()
        a(f"""
        v_bfe_u32 v1, v0, 2, 2
        v_bfe_u32 v2, v0, 4, 1
        v_lshl_add_u32 v1, v1, 1, v2
        v_and_b32 v2, 0x23, v0
        v_lshl_add_u32 v1, v1, 2, v2
        v_lshlrev_b32 v10, 4, v1
        s_mul_i32 {sU1}, {sW}, {KVS}
        v_add_u32 v126, {sU1}, v10
        v_add_u32 v127, {sU1}, {vL16}
        v_mov_b32 v3, {vL16}
        v_lshrrev_b32 v1, 5, v0
        v_lshlrev_b32 v1, 8, v1
        v_add_u32 v2, 1024, v1
        v_lshl_add_u32 v2, {vN}, 4, v2
        v_mov_b32 v1, 0x40000
        s_mov_b32 vcc_lo, 0xfffe0000
        s_mov_b32 vcc_hi, 0xfffe0000
        v_cndmask_b32 v2, v2, v1, vcc
        v_add_u32 v5, 512, v2
        v_mov_b32 v1, 2048
        s_mov_b32 vcc_lo, 0x00010000
        s_mov_b32 vcc_hi, 0x00010000
        v_cndmask_b32 v99, v2, v1, vcc
        v_cndmask_b32 v5, v5, v1, vcc
        v_mov_b32 v2, 0xdddddddd
        v_add_u32 v9, {L_W}, {vL16}
        v_add_u32 v100, {L_UBP}, v103
        s_lshl_b32 {T0}, {sW}, 9
        v_add_u32 v101, {T0}, v100
        """)
        self.srd(sOUT, 20, 2048 * 1024)
        a("v_pk_add_f32 v[16:17], v[16:17], v[18:19]")
        a("ds_write_b64 v101, v[16:17]")
        self.check(hS, statld, ["v121", ("x", "v123")])
        a(f"""
        s_getreg_b32 {T0}, hwreg(HW_REG_XCC_ID, 0, 4)
        s_xor_b32 {T0}, {T0}, {sTAG}
        v_cmp_ne_u32 vcc, {T0}, v123
        v_mul_f32 v120, -v120, v122
        v_and_b32 v1, 31, v0
        v_lshl_add_u32 v1, v1, 2, {T2}
        s_or_b32 {T0}, vcc_lo, vcc_hi
        ds_write_b32 v1, v122 offset:512
        ds_write_b32 v1, v120 offset:640
        v_mov_b32 v121, {T0}
        s_lshl2_add_u32 {T0}, {sW}, {L_SC}
        v_mov_b32 v1, {T0}
        ds_write_b32 v1, v121
        v_mov_b32 v4, v99
        """)
        a.wait(lg=0)
        a("s_barrier")
        self.stamp("wready", (0, 3))
        aK, aV, aQ = (16, 20), (24, 28), (32, 36)
        WB = lambda n, i: 56 + ((n % 4) * 2 + i) * 4
        order = list(range(16))

        def wread(n):
            for i in range(2):
                a(f"ds_read_b128 {vr(WB(n, i))}, v9 offset:{order[n] * 3072 + (i + 1) * 1024}")

        def mm(T, s, p, wb, first):
            acc = (aQ, aK, aV)[p][T]
            c = "0" if first else vr(acc)
            if p == 2:
                a(f"v_mfma_f32_16x16x32_bf16 {vr(acc)}, {vr(XF(T, s))}, {vr(wb)}, {c}")
            else:
                a(f"v_mfma_f32_16x16x32_bf16 {vr(acc)}, {vr(wb)}, {vr(XF(T, s))}, {c}")

        def ub0():
            for i in range(8):
                a(f"ds_read_b64 {vr(40 + 2 * i, 2)}, v100 offset:{512 * i}")

        def ub1():
            a(unpk(f"""
            v_pk_add_f32 v[40:41], v[40:41], v[42:43]
            v_pk_add_f32 v[44:45], v[44:45], v[46:47]
            v_pk_add_f32 v[48:49], v[48:49], v[50:51]
            v_pk_add_f32 v[52:53], v[52:53], v[54:55]
            v_pk_add_f32 v[40:41], v[40:41], v[44:45]
            v_pk_add_f32 v[48:49], v[48:49], v[52:53]
            v_pk_add_f32 v[40:41], v[40:41], v[48:49]
            ds_write_b32 v105, v40
            ds_write_b32 v105, v41 offset:256
            """))

        def ub2():
            a(f"""
            v_lshl_add_u32 v100, {vG4}, 4, {T2}
            v_lshl_add_u32 v101, {vN}, 2, {T2}
            ds_read_b128 v[40:43], v100 offset:64     ; u_k
            ds_read_b128 v[104:107], v100 offset:320  ; b_k
            ds_read2_b32 v[120:121], v101 offset0:128 offset1:160  ; r, mr (T0)
            ds_read2_b32 v[122:123], v101 offset0:144 offset1:176  ; r, mr (T1)
            """)

        def ub2b():
            a(f"""
            ds_read_b128 v[48:51], v100               ; u_q
            ds_read_b128 v[108:111], v100 offset:256  ; b_q
            ds_read2_b32 v[124:125], v101 offset0:32 offset1:96    ; u_v, b_v
            ds_read_b128 v[112:115], v100 offset:640
            ds_read_b128 v[116:119], v100 offset:704
            """)

        def ub3():
            for i in range(4):
                a(f"v_fma_f32 v{44 + i}, v123, v{40 + i}, v{104 + i}")
                a(f"v_fma_f32 v{40 + i}, v121, v{40 + i}, v{104 + i}")

        def ub4():
            for i in range(4):
                a(f"v_fma_f32 v{52 + i}, v123, v{48 + i}, v{108 + i}")
                a(f"v_fma_f32 v{48 + i}, v121, v{48 + i}, v{108 + i}")
            a("""
            ds_read_b128 v[104:107], v100 offset:512  ; r tokens T0
            ds_read_b128 v[108:111], v100 offset:576  ; r tokens T1
            """)

        def ub5():
            for i in range(8):
                a(f"v_fma_f32 v{112 + i}, v{112 + i}, v124, v125")

        def ub6():
            for i in range(8):
                a(f"v_mul_f32 v{48 + i}, {f2u(QSCALE)}, v{48 + i}")
            a(f"v_mul_f32 v121, {f2u(QSCALE)}, v120")
            a(f"v_mul_f32 v123, {f2u(QSCALE)}, v122")

        def m2_reduce():
            a(f"""
            s_lshl2_add_u32 {T0}, {sGX}, {sCG}
            s_lshl_b32 {T0}, {T0}, 13
            s_add_u32 {T0}, {T0}, {WS_MODP + 0x20000 - 4 * 8192}
            s_add_u32 {T1}, {T0}, 4096
            """)
            R = 220
            ld = "\n".join(f"buffer_load_dwordx4 {vr(R + 4 * i)}, {vL16}, {sWS}, {T0 if i < 4 else T1} offen offset:{(i & 3) * 1024} sc1" for i in range(8))
            self.poll(ld, [f"v{R + 1 + 2 * i}" for i in range(16)])
            for i in range(1, 8):
                a(f"v_add_f32 v{R}, v{R}, v{R + 4 * i}")
                a(f"v_add_f32 v{R + 2}, v{R + 2}, v{R + 2 + 4 * i}")
            a(f"""
            v_mov_b32 v{R + 1}, v{R}
            v_mov_b32 v{R + 3}, v{R + 2}
            s_cmp_eq_u32 {sCG}, 6
            s_cselect_b32 {T1}, 1.0, 0
            v_permlane32_swap_b32 v{R}, v{R + 1}
            v_permlane32_swap_b32 v{R + 2}, v{R + 3}
            v_add_f32 v{R}, v{R}, v{R + 1}
            v_add_f32 v{R + 2}, v{R + 2}, v{R + 3}
            v_cvt_pk_bf16_f32 v{R}, v{R}, v{R + 2}
            v_lshlrev_b32 v{R + 2}, 16, v{R}
            v_and_b32 v{R + 3}, 0xffff0000, v{R}
            v_add_f32 v{R + 2}, {T1}, v{R + 2}
            v_add_f32 v{R + 3}, {T1}, v{R + 3}
            v_cvt_pk_bf16_f32 v{R}, v{R + 2}, v{R + 3}
            v_mov_b32 v{R + 1}, {sTAG}
            s_lshl3_add_u32 {T0}, {sCG}, {sGX}
            s_lshl_b32 {T0}, {T0}, 8
            s_add_u32 {T0}, {T0}, {WS_MODG + 512 * 8 - 4 * 8 * 256}
            s_mov_b32 exec_hi, 0
            buffer_store_dwordx2 {vr(R, 2)}, v103, {sWS}, {T0} offen sc1
            s_mov_b32 exec_hi, -1
            """)
        self.m2_reduce = m2_reduce

        def late_scalars():
            a(f"""
            s_mov_b32 {T3}, {sU1}
            s_lshl_b32 {sKVB}, {sJ}, 17
            s_add_u32 {sKVB}, {sKVB}, {WS_KV}
            s_lshl3_add_u32 {T4}, {sGX}, {sW}
            s_lshl_b32 {T4}, {T4}, 11
            s_add_u32 {T4}, {T4}, {sKVB}
            s_lshl_b32 {T0}, s2, 7
            s_lshl2_add_u32 {T0}, {sW}, {T0}
            s_add_u32 {T5}, {T0}, {WS_KVFLAG}
            """)

        extra = {0: [ub0], 2: [ub1], 3: [ub2], 5: [ub2b], 6: [ub3], 8: [ub4], 10: [ub5], 12: [ub6]}
        for n in range(2 * XL):
            extra.setdefault(n, []).append(x_piece)
        qn = o.get("qn", 3)
        extra.setdefault(qn, []).append(lambda: wdma(0, (0,)))
        extra.setdefault(qn + 1, []).append(lambda: wdma(1, (0,)))
        extra.setdefault(9, []).append(late_scalars)
        assert 2 * XL <= 5 or o.get("pfn", 5) >= 2 * XL
        extra.setdefault(o.get("pfn", 5), []).append(self.pf_dma)

        for n in range(XL):
            extra.setdefault((9, 10, 11, 12)[4 - XL + n], []).append(lambda: x_read(1))
        LA = 3
        for n in range(LA):
            wread(n)
        for n in range(16):
            if n + LA == 8:
                a.waith(hw[1, 2])
                a("s_barrier")
                self.stamp("st2", 3)
            for i in range(2):
                for T in range(2):
                    mm(T, order[n], i + 1, WB(n, i), n == 0)
                if n + LA < 16:
                    a(f"ds_read_b128 {vr(WB(n + LA, i))}, v9 offset:{order[n + LA] * 3072 + (i + 1) * 1024}")
            for fn in extra.get(n, []):
                fn()
        self.stamp("gemm", 3)
        for T in range(2):
            for i in range(4):
                a(f"v_fma_f32 v{aK[T] + i}, v{120 + 2 * T}, v{aK[T] + i}, v{40 + 4 * T + i}")
        a("""
        v_cvt_pk_bf16_f32 v40, v16, v17
        v_cvt_pk_bf16_f32 v41, v18, v19
        v_cvt_pk_bf16_f32 v42, v20, v21
        v_cvt_pk_bf16_f32 v43, v22, v23
        """)
        for i in range(4):
            a(unpk(f"v_pk_fma_f32 {vr(24 + 2 * i, 2)}, {vr(104 + 2 * i, 2)}, {vr(24 + 2 * i, 2)}, {vr(112 + 2 * i, 2)}"))
        a("""
        v_permlane16_swap_b32 v40, v42
        v_permlane16_swap_b32 v41, v43
        v_cvt_pk_bf16_f32 v44, v24, v25
        v_cvt_pk_bf16_f32 v45, v26, v27
        v_cvt_pk_bf16_f32 v46, v28, v29
        v_cvt_pk_bf16_f32 v47, v30, v31
        """)
        a(f"buffer_store_dwordx4 v[40:43], v10, {sWS}, {T4} offen sc1")
        hKV = a(f"buffer_store_dwordx4 v[44:47], {vL16}, {sWS}, {T4} offen offset:1024 sc1")
        self.stamp("kvdone", (0, 3))
        a.waith(hw[1, 0])
        a("s_barrier")
        WQ = lambda s: 56 + (s % 8) * 4
        for s in range(5):
            a(f"ds_read_b128 {vr(WQ(s))}, v9 offset:{s * 3072}")
        a(f"""
        ds_write_b128 v126, v[40:43]
        ds_write_b128 v127, v[44:47] offset:1024
        v_mov_b32 v124, 0x3f803f80
        v_mov_b32 v125, 0x3f803f80
        v_mov_b32 v126, 0x3f803f80
        v_mov_b32 v127, 0x3f803f80
        v_mov_b32 v1, {T3}
        s_mov_b64 exec, 1
        ds_write_b128 v1, v[124:127] offset:2048
        s_mov_b64 exec, -1
        v_mov_b32 v91, {sTAG}
        """)
        for s in range(16):
            if s + 5 < 16:
                a(f"ds_read_b128 {vr(WQ(s + 5))}, v9 offset:{(s + 5) * 3072}")
            for T in range(2):
                mm(T, s, 0, WQ(s), s == 0)
        self.pf_tr()
        for T in range(2):
            for i in range(4):
                a(f"v_fma_f32 v{aQ[T] + i}, v{121 + 2 * T}, v{aQ[T] + i}, v{48 + 4 * T + i}")
        a("""
        v_cvt_pk_bf16_f32 v64, v32, v33
        v_cvt_pk_bf16_f32 v65, v34, v35
        v_cvt_pk_bf16_f32 v66, v36, v37
        v_cvt_pk_bf16_f32 v67, v38, v39
        v_permlane16_swap_b32 v64, v66
        v_permlane16_swap_b32 v65, v67
        """)
        a.waith(hKV)
        a.wait(lg=0)
        a("s_barrier")
        self.cond(f"s_cmp_lg_u32 {sW}, 0", lambda: self.flag_store("v91", vL16, T5, "sc1"))()
        self.stamp("B0", (0, 1, 3, 9))
        if self.stop == "qkv":
            a(f"""
            s_lshl_b32 {T0}, {sW}, 5
            s_add_u32 {T0}, {T0}, {sJ}
            s_lshl_b32 {T0}, {T0}, 10
            s_add_u32 {T0}, {T0}, {sGRP}
            buffer_store_dwordx4 v[64:67], {vL16}, {sWS}, {T0} offen
            """)
            return self.finish()
        self.attention()
        if self.stop == "attn":
            return self.finish()
        self.post()
        return self.finish()

    def pf_issue(self):
        a = self.a
        a(f"""
        s_mov_b32 s55, 0x20000
        s_mov_b64 s[52:53], s[8:9]
        s_mov_b32 s54, {512 * 1024}
        s_lshl3_add_u32 {sTASK}, s2, {sW}
        s_lshl_b32 {sLOC}, {sW}, 11
        s_add_u32 {sLOC}, {sLOC}, {L_PFS}
        v_lshrrev_b32 v94, 2, v0
        v_and_b32 v1, 0x30, v6
        v_and_b32 v2, 3, v0
        v_lshl_add_u32 v95, v2, 3, {sLOC}
        v_bfe_u32 v2, v0, 2, 2
        s_cmp_ge_u32 s2, 86
        s_cbranch_scc1 L_pf_n1
        s_mov_b64 s[52:53], s[12:13]
        s_mov_b32 s54, {512 * 2752}
        s_movk_i32 {T0}, 2752
        v_mad_u32_u24 v94, v94, {T0}, v1
        s_mul_i32 {T0}, {sTASK}, 1525
        s_lshr_b32 {T0}, {T0}, 16              ; k-step = u / 43
        s_mul_i32 {T1}, {T0}, 43
        s_sub_u32 {T1}, {sTASK}, {T1}
        s_lshl_b32 {sPFD}, {T1}, 15
        s_lshl_b32 {sTASK2}, {T0}, 10
        s_add_u32 {sPFD}, {sPFD}, {sTASK2}
        s_add_u32 {sPFD}, {sPFD}, {WS_W1F}
        s_add_u32 {sTASK2}, {sPFD}, 16384
        s_mul_i32 {T0}, {T0}, {32 * 2752}
        s_lshl_b32 {T1}, {T1}, 6
        s_add_u32 {T0}, {T0}, {T1}
        s_add_u32 {T1}, {T0}, {16 * 2752}
        v_lshl_add_u32 v95, v2, 6, v95
        v_lshl_add_u32 v95, v7, 9, v95
        s_movk_i32 {sKS}, 256
        s_movk_i32 {sW2B}, 32
        s_branch L_pf_go
        L_pf_n1:
        s_cmp_lt_u32 s2, 118
        s_cbranch_scc1 L_pf_n2
        s_mov_b64 s[52:53], s[14:15]
        s_mov_b32 s54, {1376 * 1024}           ; blocks >= 204 lie past the end: nothing is fetched
        v_lshrrev_b32 v94, 3, v0
        v_and_b32 v1, 0x70, v6
        v_lshl_add_u32 v94, v94, 10, v1
        s_sub_u32 {sTASK2}, s2, 118
        s_lshl_b32 {T0}, {sTASK2}, 14
        s_lshl_b32 {T1}, {sW}, 7
        s_add_u32 {T0}, {T0}, {T1}
        s_add_u32 {T1}, {T0}, 8192
        s_mul_i32 {sPFD}, {sW}, {86 * 2048}
        s_lshl_b32 {sTASK2}, {sTASK2}, 11
        s_add_u32 {sPFD}, {sPFD}, {sTASK2}
        s_add_u32 {sPFD}, {sPFD}, {WS_W2F}
        s_add_u32 {sTASK2}, {sPFD}, 1024
        v_lshl_add_u32 v95, v2, 7, v95
        v_lshrrev_b32 v2, 5, v0
        v_lshl_add_u32 v95, v2, 10, v95
        v_and_b32 v2, 1, v7
        v_lshl_add_u32 v95, v2, 5, v95
        s_movk_i32 {sKS}, 512
        s_movk_i32 {sW2B}, 64
        s_branch L_pf_go
        L_pf_n2:
        v_lshl_add_u32 v94, v94, 10, v1
        s_sub_u32 {T1}, {sTASK}, 688
        s_lshr_b32 {T0}, {T1}, 4
        s_and_b32 {T1}, {T1}, 15
        s_lshl_b32 {sPFD}, {T1}, 15
        s_lshl_b32 {sTASK2}, {T0}, 10
        s_add_u32 {sPFD}, {sPFD}, {sTASK2}
        s_add_u32 {sPFD}, {sPFD}, {WS_WOF}
        s_add_u32 {sTASK2}, {sPFD}, 16384
        s_lshl_b32 {T0}, {T0}, 15
        s_lshl_b32 {T1}, {T1}, 6
        s_add_u32 {T0}, {T0}, {T1}
        s_add_u32 {T1}, {T0}, {16 * 1024}
        v_lshl_add_u32 v95, v2, 6, v95
        v_lshrrev_b32 v2, 5, v0
        v_lshl_add_u32 v95, v2, 10, v95
        v_and_b32 v2, 1, v7
        v_lshl_add_u32 v95, v2, 8, v95
        s_movk_i32 {sKS}, 512
        s_movk_i32 {sW2B}, 32
        L_pf_go:
        s_mov_b32 s10, {T0}
        s_mov_b32 s11, {T1}
        s_cmp_lt_u32 s2, 204
        s_cselect_b32 {sPFD}, {sPFD}, {WS_SIZE}
        s_cselect_b32 {sTASK2}, {sTASK2}, {WS_SIZE}
        """)

    def pf_dma(self):
        a = self.a
        a(f"s_mov_b32 m0, {sLOC}")
        self.dma("v94", sPF, "s10", sc="nt")
        a(f"s_add_u32 m0, {sLOC}, 1024")
        self.hPF = self.dma("v94", sPF, "s11", sc="nt")

    def pf_tr(self):
        a = self.a
        a.waith(self.hPF)
        a(f"""
        v_add_u32 v94, {sKS}, v95
        ds_read_b64_tr_b16 v[112:113], v95
        ds_read_b64_tr_b16 v[114:115], v94
        v_add_u32 v95, {sW2B}, v95
        v_add_u32 v94, {sW2B}, v94
        ds_read_b64_tr_b16 v[116:117], v95
        ds_read_b64_tr_b16 v[118:119], v94
        """)

    def pf_store(self):
        a = self.a
        a(f"buffer_store_dwordx4 v[112:115], v6, {sWS}, {sPFD} offen sc1")
        self.hPS = a(f"buffer_store_dwordx4 v[116:119], v6, {sWS}, {sTASK2} offen sc1")

    def ln1_stats(self):
        a = self.a
        for i in range(4):
            a(f"v_lshlrev_b32 v{24 + 2 * i}, 16, v{20 + i}")
            a(f"v_and_b32 v{25 + 2 * i}, 0xffff0000, v{20 + i}")
        a("""
        v_pk_add_f32 v[32:33], v[24:25], v[26:27]
        v_pk_add_f32 v[34:35], v[28:29], v[30:31]
        v_pk_add_f32 v[32:33], v[32:33], v[34:35]
        v_add_f32 v32, v32, v33
        """)

        def wave_sum(v):
            for m in ("row_shr:1 row_mask:0xf", "row_shr:2 row_mask:0xf", "row_shr:4 row_mask:0xf",
                      "row_shr:8 row_mask:0xf", "row_bcast:15 row_mask:0xa", "row_bcast:31 row_mask:0xc"):
                a(f"v_add_f32_dpp {v}, {v}, {v} {m} bank_mask:0xf")

        wave_sum("v32")
        a(f"v_mul_f32 v32, {f2u(1.0 / 512)}, v32")
        a(f"v_readlane_b32 {T0}, v32, 63")
        for i in range(8):
            a(f"v_subrev_f32 v{24 + i}, {T0}, v{24 + i}")
        a("v_mul_f32 v33, v24, v24")
        for i in range(1, 8):
            a(f"v_fmac_f32 v33, v{24 + i}, v{24 + i}")
        wave_sum("v33")
        a(f"""
        v_mov_b32 v34, {f2u(1e-5)}
        v_fmac_f32 v34, {f2u(1.0 / 512)}, v33
        v_rsq_f32 v34, v34
        s_getreg_b32 {T0}, hwreg(HW_REG_XCC_ID, 0, 4)
        s_xor_b32 {T0}, {T0}, {sTAG}
        v_mov_b32 v33, {sTAG}
        v_mov_b32 v35, {T0}
        s_lshl_b32 {T0}, {sW}, 4
        s_add_u32 {T0}, {T0}, {L_P}
        v_mov_b32 v1, {T0}
        s_mov_b32 exec_lo, 0
        s_mov_b32 exec_hi, 0x80000000
        ds_write_b128 v1, v[32:35]
        s_mov_b64 exec, -1
        """)

    def scale_pre(self, g, t0, a1, a2, sG, base):
        a = self.a
        a(f"""
        v_and_b32 v{t0}, 0xffff, {g}
        v_and_b32 v{t0 + 1}, 0xffff0000, {g}
        v_lshl_add_u32 {a1}, v0, 3, {sG}
        v_lshl_add_u32 {a2}, v0, 2, {sG}
        ds_write_b64 {a1}, v[{t0}:{t0 + 1}]
        ds_write_b32 {a2}, {g} offset:512
        v_lshl_add_u32 {a1}, v7, 5, {sG}
        v_and_b32 {a2}, 1, v0
        v_lshlrev_b32 {a2}, 7, {a2}
        v_lshl_add_u32 {a2}, v7, 4, {a2}
        v_add_u32 {a2}, {sG}, {a2}
        """)
        for sp in range(2):
            a(f"ds_read_b128 {vr(base + 20 + 8 * sp)}, {a1} offset:{sp * 128}")
            a(f"ds_read_b128 {vr(base + 24 + 8 * sp)}, {a1} offset:{sp * 128 + 16}")
        for sp in range(2):
            a(f"ds_read_b128 {vr(base + 4 * sp)}, {a2} offset:{512 + sp * 64}")

    def scale_frag(self, src, tmp, dst, base, sp):
        a = self.a
        gf = base + 20 + 8 * sp
        for i in range(8):
            a(f"v_dot2_f32_bf16 v{tmp + i}, v{src + (i >> 1)}, v{gf + i}, 0")
        for i in range(4):
            a(f"v_cvt_pk_bf16_f32 v{dst + i}, v{tmp + 2 * i}, v{tmp + 2 * i + 1}")

    def scale_ub(self, nparts, Wp, base, a1):
        a = self.a
        ACC = lambda p: base + 8 + 4 * p
        for sp in range(2):
            for p in range(nparts):
                c = "0" if sp == 0 else vr(ACC(p))
                a(f"v_mfma_f32_16x16x32_bf16 {vr(ACC(p))}, {vr(base + 4 * sp)}, {vr(Wp(sp, p))}, {c}")
        a(f"""
        s_lshl_b32 {T1}, {sW}, 3
        s_add_u32 {T1}, {T1}, {L_UBP}
        v_lshl_add_u32 {a1}, v8, 6, {T1}
        """)
        for p in range(nparts):
            a(f"ds_write_b64 {a1}, {vr(ACC(p), 2)} offset:{p * 1024}")

    def attention(self):
        a = self.a
        vL16 = "v6"
        S = (16, 32)
        O, Q, K, V2 = 48, 64, 68, 72
        V1 = (76, 80)
        base = {"v3": 0, "v4": 0, "v5": 0}

        def rd(dst, addr, t):
            off = t * KVS - base[addr]
            if off > 65535:
                a(f"v_add_u32 {addr}, {off}, {addr}")
                base[addr] += off
                off = 0
            return a(f"ds_read_b128 {vr(dst)}, {addr} offset:{off}")

        def kv_dma(chunk, col):
            a(f"""
            s_add_u32 {T0}, {sGX}, {chunk}
            s_and_b32 {T0}, {T0}, 7
            s_lshl_b32 {T0}, {T0}, 3
            s_add_u32 {T0}, {T0}, {col}
            s_lshl_b32 {T0}, {T0}, 11
            s_add_u32 {T0}, {T0}, {sKVB}
            s_mul_i32 {T1}, {col}, {KVS}
            s_add_u32 m0, {T1}, {chunk * 8 * KVS}
            """)
            self.dma(vL16, sWS, T0, sc="sc1")
            return self.dma(vL16, sWS, T0, off=1024, sc="sc1")

        H = {}
        side = {}

        def at(t, fn):
            side.setdefault(t, []).append(fn)

        o = self.opt
        kvld = f"buffer_load_dword v84, v85, {sWS}, {T4} offen sc1"

        def onlyA(fn):
            def g():
                lab = a.newlabel("L_onlyA")
                a(f"s_cmp_ge_u32 {sW}, 4")
                a(f"s_cbranch_scc1 {lab}")
                s0 = a.snap()
                fn()
                a.merge(s0)
                a.L(lab)
            return g

        def s0_issue():
            a(f"""
            v_min_u32 v85, 6, v0
            v_add3_u32 v85, v85, {sGX}, 1
            v_and_b32 v85, 7, v85
            v_lshlrev_b32 v85, 7, v85
            s_lshl_b32 {T4}, {sJ}, 10
            s_add_u32 {T4}, {T4}, {WS_KVFLAG}
            """)
            H["kvf"] = a(kvld)

        def s0_poll():
            self.check(H["kvf"], kvld, ["v84"])
            self.stamp("kvflag", 1)
            a(f"s_add_u32 {T2}, {sW}, 4")
            for ch in (1, 2):
                kv_dma(ch, sW)
                H[ch] = kv_dma(ch, T2)
            a("s_setprio 0")

        at(o.get("ti", 1), onlyA(s0_issue))
        at(o.get("tp", 3), onlyA(s0_poll))

        if o.get("pfs", 1):
            at(6, self.cond(f"s_cmp_lt_u32 {sW}, 4", lambda: a.waith(self.hPS)))
        bars = {1: ((1,), (3, 4)), 2: ((2,), (5,)), 3: ((3, 4), (6, 7)), 5: ((5, 6, 7), ())}
        if o.get("bs", 1) == 1:
            bars = {1: ((1,), (3,)), 2: ((2,), (4, 5)), 3: ((3, 4), (6, 7)), 5: ((5, 6, 7), ())}
        if o.get("allbar"):
            bars = {c: ((c,), (c + 2,) if c + 2 < 8 else ()) for c in range(1, 8)}
        bl = sorted(bars)
        for c in bl:
            def bar(c=c):
                a.waith(*[H[k] for k in bars[c][0]], *H.get(("extra", c), []))
                a.waith(*H.get(("lds", c), []))
                self.stamp(f"pre{c}", 2)
                a("s_barrier")
                self.stamp(f"bar{c}", (1, 2))
                a("s_setprio 3")
                for k in bars[c][1]:
                    H[k] = kv_dma(k, sW)
            t0 = 8 * c - 2
            t1 = 8 * bl[bl.index(c) + 1] - 2 if c != bl[-1] else 64
            n = t1 - t0
            at(t0, bar)
            at(t0 + n // 2, lambda: a("s_setprio 2"))
            at(t1 - max(2, n // 6), lambda: a("s_setprio 1"))
            at(t1 - 1, lambda: a("s_setprio 0"))

        def ones_rest(mask, c):
            a(f"s_mov_b64 exec, {mask}")
            H[("lds", c)] = [a("ds_write_b128 v90, v[124:127] offset:2048")]
            a("s_mov_b64 exec, -1")
        at(23, lambda: ones_rest(0xc0, 5))
        self.side_work(at, H)

        rd(K, "v3", 0)
        rd(V1[0], "v4", 0)
        rd(V1[1], "v4", 1)
        a(f"""
        v_and_b32 v86, 7, v0
        v_mul_u32_u24 v90, {8 * KVS}, v86
        v_add_u32 v90, {T3}, v90
        v_lshlrev_b32 v86, 2, v86
        v_add_u32 v86, {L_SC}, v86
        """)
        a("s_mov_b64 exec, 0x3f")
        H[("lds", 1)] = [a("ds_write_b128 v90, v[124:127] offset:2048")]
        a("s_mov_b64 exec, -1")
        a("ds_read_b32 v86, v86")
        onlyA(lambda: a("s_setprio 1"))()
        a(f"""
        v_cmp_ne_u32 vcc, 0, v86
        s_cmp_eq_u64 vcc, 0
        s_cselect_b32 {sLOC}, 1, 0
        """)
        if self.force_safe:
            a(f"s_mov_b32 {sLOC}, 0")
        for i in range(16):
            a(f"v_mov_b32 v{O + i}, 0")
        a(f"v_mfma_f32_32x32x16_bf16 {vr(S[0], 16)}, {vr(K)}, {vr(Q)}, 0")
        rd(K, "v3", 1)
        for t in range(64):
            Sa, Sb = S[t & 1], S[(t + 1) & 1]
            a.C(f"tile {t}")
            for fn in side.get(t, []):
                fn()
            e = lambda i: a(f"v_exp_f32 v{Sa + i}, v{Sa + i}")
            e(0)
            if t > 0:
                a.waith(hv2, hk)
            e(1)
            if t > 0:
                a(f"v_smfmac_f32_32x32x32_bf16 {vr(O, 16)}, {vr(V2)}, {vr(Sb + 8, 8)}, v2")
            hv2 = rd(V2, "v5", t)
            for i in (2, 3, 4):
                e(i)
            if t + 1 < 64:
                a(f"v_mfma_f32_32x32x16_bf16 {vr(Sb, 16)}, {vr(K)}, {vr(Q)}, 0")
                if t + 2 < 64:
                    hk = rd(K, "v3", t + 2)
            for i in (5, 6, 7, 8, 9):
                e(i)
            a(f"v_smfmac_f32_32x32x32_bf16 {vr(O, 16)}, {vr(V1[t & 1])}, {vr(Sa, 8)}, v2")
            if t + 2 < 64:
                rd(V1[t & 1], "v4", t + 2)
            for i in range(10, 16):
                e(i)
        a(f"v_smfmac_f32_32x32x32_bf16 {vr(O, 16)}, {vr(V2)}, {vr(S[1] + 8, 8)}, v2")
        a("s_setprio 0")
        a(f"""
        s_mov_b32 {T0}, {f2u(2.0 ** -40)}
        s_mov_b32 {T1}, {f2u(2.0 ** 40)}
        v_mov_b32 v16, v{O + 8}
        v_permlane32_swap_b32 v16, v{O + 8}
        v_cmp_nle_f32 vcc, {T0}, v16
        v_cmp_nge_f32 s[82:83], {T1}, v16
        s_or_b64 vcc, vcc, s[82:83]
        """)
        if self.force_slow:
            a("s_branch L_slow")
        else:
            a("s_cbranch_vccnz L_slow")
        self.slow_state = a.snap()
        self.slow_base = dict(base)
        a.L("L_attn_done")
        self.stamp("attn", (0, 1, 5, 9))
        a("v_rcp_f32 v16, v16")
        a(f"v_mov_b32 v18, {sTAG}")
        for i in range(8):
            a(f"v_mul_f32 v{O + i}, v16, v{O + i}")
        for i in range(4):
            a(f"v_cvt_pk_bf16_f32 v{20 + i}, v{O + 2 * i}, v{O + 2 * i + 1}")

        def st(sc):
            a(f"buffer_store_dwordx4 v[20:23], {vL16}, {sWS}, {pOST} offen {sc}")
            a(f"""
            v_lshlrev_b32 v1, 2, v8
            v_and_b32 v11, 1, v0
            v_mul_u32_u24 v11, 1088, v11
            v_lshl_add_u32 v11, v7, 4, v11
            v_add_u32 v11, {L_GS}, v11
            v_lshlrev_b32 v9, 9, v7
            v_lshl_add_u32 v9, v8, 4, v9
            v_add_u32 v10, {pW2S}, {vL16}
            """)
            a.wait(vm=0)
            self.flag_store("v18", vL16, pOFL, sc)
        self.pub(st)

    def slow_path(self):
        a = self.a
        a.restore(self.slow_state)
        O, Q, K, V2, V1 = 48, 64, 68, 72, 76
        a.L("L_slow")
        a.wait(vm=0, lg=0)
        for r in ("v3", "v4", "v5"):
            a(f"v_subrev_u32 {r}, {self.slow_base[r]}, {r}")
        a(f"""
        v_mov_b32 v32, 0xff800000
        v_mov_b32 v1, v3
        s_mov_b32 {T0}, 64
        L_slow1:
        ds_read_b128 {vr(K)}, v1
        v_add_u32 v1, {KVS}, v1
        v_mfma_f32_32x32x16_bf16 v[16:31], {vr(K)}, {vr(Q)}, 0
        """)
        for i in range(8):
            a(f"v_max3_f32 v32, v32, v{16 + 2 * i}, v{17 + 2 * i}")
        a(f"""
        s_sub_u32 {T0}, {T0}, 1
        s_cmp_lg_u32 {T0}, 0
        s_cbranch_scc1 L_slow1
        v_mov_b32 v33, v32
        v_permlane32_swap_b32 v32, v33
        v_max_f32 v32, v32, v33
        v_sub_f32 v32, 0, v32
        """)
        for i in range(1, 16):
            a(f"v_mov_b32 v{32 + i}, v32")
        for i in range(16):
            a(f"v_mov_b32 v{O + i}, 0")
        a(f"""
        s_mov_b32 {T0}, 64
        L_slow2:
        ds_read_b128 {vr(K)}, v3
        ds_read_b128 {vr(V1)}, v4
        ds_read_b128 {vr(V2)}, v5
        v_add_u32 v3, {KVS}, v3
        v_add_u32 v4, {KVS}, v4
        v_add_u32 v5, {KVS}, v5
        s_waitcnt lgkmcnt(0)
        v_mfma_f32_32x32x16_bf16 v[16:31], {vr(K)}, {vr(Q)}, v[32:47]
        """)
        for i in range(16):
            a(f"v_exp_f32 v{16 + i}, v{16 + i}")
        a(f"""
        v_smfmac_f32_32x32x32_bf16 {vr(O, 16)}, {vr(V1)}, v[16:23], v2
        v_smfmac_f32_32x32x32_bf16 {vr(O, 16)}, {vr(V2)}, v[24:31], v2
        s_sub_u32 {T0}, {T0}, 1
        s_cmp_lg_u32 {T0}, 0
        s_cbranch_scc1 L_slow2
        v_mov_b32 v16, v{O + 8}
        v_permlane32_swap_b32 v16, v{O + 8}
        s_branch L_attn_done
        """)

    def cond(self, cmp, fn):
        def g():
            a = self.a
            lab = a.newlabel("L_skip")
            a(cmp)
            a(f"s_cbranch_scc1 {lab}")
            s0 = a.snap()
            fn()
            a.merge(s0)
            a.L(lab)
        return g

    def side_work(self, at, H):
        a = self.a
        o = self.opt
        vL16 = "v6"
        X = {}
        only_w = lambda w, fn: self.cond(f"s_cmp_lg_u32 {sW}, {w}", fn)

        def pf_flag():
            a(f"""
            s_lshl_b32 {T0}, s2, 7
            s_add_u32 {T0}, {T0}, {WS_KVFLAG + 4}
            """)
            self.flag_store("v91", vL16, T0, "sc1")

        pfld = f"buffer_load_dword v84, v85, {sWS}, {T5} offen sc1"

        def pf_pissue():
            a(f"""
            s_mul_i32 {T0}, {sCG}, 11
            s_cmp_eq_u32 {sCG}, 7
            s_cselect_b32 {T0}, 76, {T0}
            s_lshl_b32 {T1}, {sW}, 1
            s_add_u32 {sU0}, {T0}, {T1}
            s_add_u32 {sU1}, {sU0}, 1
            s_add_u32 {T1}, {T0}, {sW}
            s_add_u32 {T1}, {T1}, 4
            s_min_u32 {T1}, {T1}, 85
            s_lshl_b32 {T2}, {sCG}, 2
            s_add_u32 {T2}, {T2}, {sW}
            s_sub_u32 {T2}, {T2}, 4
            s_lshl_b32 {T2}, {T2}, 14
            s_add_u32 {T2}, {T2}, {WS_WOF}
            s_lshl_b32 {sB0}, {sU0}, 14
            s_add_u32 {sB0}, {sB0}, {WS_W1F}
            s_cmp_ge_u32 {sW}, 4
            s_cselect_b32 {sB0}, {T2}, {sB0}
            s_cselect_b32 {sU1}, {T1}, {sU1}
            s_cselect_b32 {sU0}, {T1}, {sU0}
            s_lshl_b32 {sB1}, {sU1}, 14
            s_add_u32 {sB1}, {sB1}, {WS_W1F}
            s_mul_i32 {T0}, {sW}, 11
            s_cmp_eq_u32 {sW}, 7
            s_cselect_b32 {sKS}, 76, {T0}
            s_mul_i32 {sW2B}, {sCG}, {86 * 2048}
            s_lshl_b32 {T0}, {sKS}, 11
            s_add_u32 {sW2B}, {sW2B}, {T0}
            s_add_u32 {sW2B}, {sW2B}, {WS_W2F}
            """)

        def pf_pload():
            a(f"""
            s_lshl_b32 {T5}, {sW}, 12
            s_add_u32 {T5}, {T5}, {WS_KVFLAG + 4}
            v_and_b32 v85, 31, v0
            v_lshlrev_b32 v85, 7, v85
            """)
            X["pfl"] = a(pfld)

        def pf_poll():
            self.check(X["pfl"], pfld, ["v84"], sleep=8)
            self.stamp("pfpoll", 1)

        def wload(i):
            def f():
                sb, rb, k = (sB0, 128, i) if i < 16 else (sB1, 192, i - 16)
                off = f" offset:{(k & 3) * 1024}" if k & 3 else ""
                a(f"buffer_load_dwordx4 {vr(rb + k * 4)}, {vL16}, {sWS}, {sb} offen{off} sc1")
                if k & 3 == 3:
                    a(f"s_add_u32 {sb}, {sb}, 4096")
            return f

        def touch_w(i):
            def f():
                if i == 0:
                    a(f"s_lshl_b32 {T0}, {sTQ}, 12")
                    a(f"v_lshl_add_u32 v111, v8, 7, {T0}")
                a("s_mov_b64 exec, 0xffff")
                a(f"buffer_load_dword v{112 + i}, v111, {sWS}, {sB0 if i < 2 else sB1} offen offset:{(i & 1) * 2048} sc1")
                a("s_mov_b64 exec, -1")
            return f

        def touch_w2():
            a(f"""
            v_min_u32 v111, 43, v0
            v_lshlrev_b32 v111, 7, v111
            s_mul_i32 {T0}, {sTQ}, {44 * 128}
            s_add_u32 {T0}, {T0}, {sW2B}
            buffer_load_dword v104, v111, {sWS}, {T0} offen sc1
            """)

        def touch_grp():
            a(f"""
            s_lshl_b32 {T0}, {sJ}, 3
            s_add_u32 {T0}, {T0}, {sW}
            v_min_u32 v111, 39, v0
            v_lshlrev_b32 v111, 7, v111
            s_mul_i32 {T0}, {T0}, {40 * 128}
            s_add_u32 {T0}, {T0}, {sGRP}
            """)
            tm = o.get("tm", 2)
            if tm in (1, 2):
                a(f"buffer_load_dword v105, v111, {sWS}, {T0} offen sc1 nt")
            if tm in (0, 2):
                a(f"buffer_load_dword v107, v111, {sWS}, {T0} offen sc1")

        def touch_code():
            a(f"""
            s_lshl_b32 {T0}, {sJ}, 3
            s_add_u32 {T0}, {T0}, {sW}
            s_lshl_b32 {T1}, {T0}, 7
            s_add_u32 {T1}, {T1}, L_attn_done-L_pc
            s_mov_b64 exec, 1
            buffer_load_dword v106, v6, {sCODE}, {T1} offen
            s_mov_b64 exec, -1
            """)

        def small_loads():
            a(f"""
            v_lshlrev_b32 v84, 4, v7
            s_lshl_b32 {T2}, {sCG}, 2
            s_and_b32 {T0}, {sW}, 3
            s_add_u32 {T2}, {T2}, {T0}
            s_lshl_b32 {T4}, {T2}, 6
            s_add_u32 {T4}, {T4}, {WS_MODG + 512 * 8}
            s_add_u32 {T3}, {T4}, {512 * 8}
            v_lshlrev_b32 v86, 4, v8
            s_lshl_b32 {T5}, {sCG}, 8
            s_add_u32 {T5}, {T5}, {WS_MODG + 1280 * 8}
            s_lshl_b32 {sM2}, {sW}, 8
            s_add_u32 {sM2}, {sM2}, {WS_MODG + 768 * 8}
            """)
            X["gagb"] = f"""
            buffer_load_dwordx4 v[100:103], v84, {sWS}, {T4} offen sc1
            buffer_load_dwordx4 v[88:91], v84, {sWS}, {T3} offen sc1
            buffer_load_dwordx4 v[120:123], v86, {sWS}, {T5} offen sc1
            buffer_load_dwordx2 v[108:109], v13, {sWS}, {sM2} offen sc1"""
            X["small"] = a(X["gagb"])

        def xr_loads():
            a(f"""
            v_lshlrev_b32 v85, 10, v8
            v_lshl_add_u32 v85, v7, 3, v85
            s_lshl_b32 {T0}, {sGX}, 18
            s_lshl_b32 {T1}, {sTQ}, 16
            s_add_u32 {T0}, {T0}, {T1}
            s_lshl_b32 {T2}, {T2}, 5
            s_add_u32 {T0}, {T0}, {T2}
            """)
            for T in range(4):
                a(f"buffer_load_dwordx2 {vr(92 + 2 * T, 2)}, v85, {sX}, {T0} offen")
                if T < 3:
                    a(f"s_add_u32 {T0}, {T0}, 16384")

        def small_check():
            self.check(X["small"], X["gagb"], ["v101", "v103", "v89", "v91", "v121", "v123", "v109"])
            a(f"""
            v_lshrrev_b32 v110, 5, v0
            v_mul_u32_u24 v110, {1088 - 128}, v110
            v_lshl_add_u32 v110, v0, 2, v110
            s_lshl_b32 {T0}, {sW}, 7
            s_add_u32 {T0}, {T0}, {L_GS}
            v_add_u32 v110, {T0}, v110
            ds_write_b32 v110, v108
            """)

        def post_scalars1():
            a(f"""
            s_lshl_b32 {T0}, {sW}, 5
            s_add_u32 {T0}, {T0}, {sJ}
            s_lshl_b32 {T0}, {T0}, 10
            s_add_u32 {pOST}, {T0}, {sGRP}
            s_lshr_b32 {T0}, {sW}, 1
            s_lshl_b32 {T0}, {T0}, 5
            s_add_u32 {T0}, {T0}, {sJ}
            s_and_b32 {T1}, {sW}, 1
            s_lshl1_add_u32 {T0}, {T0}, {T1}
            s_lshl2_add_u32 {T0}, {T0}, {sGRP}
            s_add_u32 {pOFL}, {T0}, {G_OFLAG}     ; (w>>1)*256 + j*8 + (w&1)*4
            s_lshl3_add_u32 {T0}, {sTQ}, {sW}
            s_lshl_b32 {T1}, {T0}, 5
            s_add_u32 {T1}, {T1}, {sGRP}
            s_add_u32 {pHPL}, {T1}, {G_HFLAG}     ; tq*256 + w*32
            s_lshl_b32 {pOPL}, {sW}, 5
            s_add_u32 {pOPL}, {pOPL}, {T1}
            s_add_u32 {pOPL}, {pOPL}, {G_OFLAG}
            s_add_u32 {T1}, {T0}, {sW}
            s_lshl_b32 {T1}, {T1}, 11
            s_add_u32 {T1}, {T1}, {sGRP}
            s_add_u32 {pSTL}, {T1}, {G_ST - 16384}   ; tq*16384 + (w-4)*4096
            s_and_b32 {T1}, {sW}, 3
            s_lshl_b32 {pW12}, {T1}, 13
            s_lshl_b32 {T0}, {sTQ}, 16
            s_add_u32 {T0}, {T0}, {sGRP}
            s_add_u32 {pSRC}, {T0}, {pW12}
            s_lshl2_add_u32 {T1}, {sCG}, {T1}
            s_lshl_b32 {pYS0}, {T1}, 10
            s_add_u32 {pYS0}, {pYS0}, {T0}
            s_add_u32 {pYS0}, {pYS0}, {G_X1}
            s_add_u32 {pYS1}, {pYS0}, 32768
            s_lshl_b32 {T0}, {sTQ}, 5
            s_add_u32 {T0}, {T0}, {T1}
            s_lshl_b32 {T0}, {T0}, 9
            s_add_u32 {T0}, {T0}, {sGRP}
            s_add_u32 {pSTS}, {T0}, {G_ST}
            s_lshl_b32 {T0}, {sTQ}, 8
            s_add_u32 {T0}, {T0}, {sGRP}
            s_add_u32 {T0}, {T0}, {G_X1FLAG}
            s_lshl2_add_u32 {pYFL}, {T1}, {T0}
            s_lshl_b32 {T1}, {sW}, 5
            s_add_u32 {pYPL}, {T1}, {T0}
            """)

        def post_scalars2():
            a(f"""
            s_mul_i32 {T0}, {sTQ}, {2 * 86 * 1024}
            s_add_u32 {T0}, {T0}, {sGRP}
            s_add_u32 {T0}, {T0}, {G_HID}
            s_lshl_b32 {T1}, {sU0}, 10
            s_add_u32 {pHS0}, {T0}, {T1}
            s_add_u32 {pHS1}, {pHS0}, {86 * 1024}
            s_lshl_b32 {T1}, {sKS}, 10
            s_add_u32 {pHLD}, {T0}, {T1}
            s_lshl3_add_u32 {T0}, {sJ}, {sW}
            s_lshl2_add_u32 {T0}, {T0}, {sGRP}
            s_add_u32 {pHFL}, {T0}, {G_HFLAG}
            s_lshl2_add_u32 {T0}, {sGX}, {sTQ}
            s_lshl_b32 {T0}, {T0}, 16
            s_lshl_b32 {T1}, {sCG}, 7
            s_add_u32 {T0}, {T0}, {T1}
            s_lshl_b32 {T1}, {sW}, 12
            s_add_u32 {pOUT}, {T0}, {T1}
            s_lshl2_add_u32 {pW2S}, {T1}, {L_X1}
            s_cmp_lt_u32 {sCG}, 6
            s_cselect_b32 {pNV}, 7, 6
            s_lshl_b32 {pRES}, {sW}, 5
            s_add_u32 {pRES}, {pRES}, {L_RES - 128}
            """)
        at(25, post_scalars1)
        at(27, post_scalars2)
        self.touch_w2 = touch_w2
        ns = o.get("ns", 0)
        def pf_st():
            self.pf_store()
            if o.get("pfs", 1) == 0:
                H[("extra", 2)] = [self.hPS]
        if o.get("pfs", 1) == 0:
            at(6, pf_st)
            at(14, only_w(0, pf_flag))
        else:
            at(0, pf_st)
            at(6, only_w(0, pf_flag))
        only_m2 = lambda fn: self.cond(f"s_cmp_lt_u32 {sJ}, 24", fn)
        tm = o.get("tm2", 8)
        at(tm, only_m2(self.m2_loads))
        for i, dt in enumerate((5, 7, 8, 9)):
            at(tm + dt, only_m2(lambda i=i: self.m2_unit(i)))

        def m2_red():
            a(f"s_lshr_b32 {T0}, {sJ}, 2")
            a(f"s_lshl3_add_u32 {T0}, {T0}, {sW}")
            self.cond(f"s_cmp_lg_u32 {T0}, {7 * 8 + 6}", self.m2_reduce)()
        at(o.get("tmr", 30), m2_red)
        at(tm + 10, pf_pissue)
        at(o.get("tpp", 19), pf_pload)
        at(21, pf_poll)
        if o.get("twt", 0):
            for i in range(4):
                at(o.get("twt", 0) + o.get("twts", 3) * i, touch_w(i))
        if not ns & 4:
            w0, wn = o.get("tw0", 22), o.get("twn", 1)
            for i in range(32):
                at(w0 + i // wn, wload(i))
        if not ns & 8:
            at(o.get("tsm", 40), small_loads)
            at(o.get("tsm", 40) + 1, self.cond(f"s_cmp_lt_u32 {sW}, 4", xr_loads))
            at(o.get("tsm", 40) + 6, small_check)
        if not ns & 16:
            at(o.get("tg", 54), self.cond(f"s_cmp_eq_u32 {sLOC}, 0", touch_grp))
            if o.get("tw2", 0):
                at(o.get("tw2", 0), touch_w2)
            at(o.get("tc", 57), touch_code)

    def post(self):
        a = self.a
        o = self.opt
        vL16 = "v6"
        a.wait(lg=0)
        a("s_barrier")
        order = [0, 1, 4, 5, 8, 9, 12, 13, 2, 3, 6, 7, 10, 11, 14, 15]

        def tile_dma(goff, half, tts=(0, 1)):
            for tt in tts:
                a(f"s_add_u32 {T0}, {pSRC}, {goff + tt * 32768 + half * 4096}")
                a(f"s_add_u32 m0, {pW12}, {L_O + tt * 32768 + half * 4096}")
                for k in range(4):
                    h = self.dma(vL16, sWS, T0, off=k * 1024, sc="sc1")
            return h

        def ub_mm(sets, bar=False):
            for s in range(8):
                a(f"ds_read_b128 {vr(16 + 4 * s)}, v11 offset:{s * 64}")
            if bar:
                a("s_barrier")
            for s in range(16):
                if s < 8:
                    a(f"ds_read_b128 {vr(48 + 4 * s)}, v11 offset:{(s + 8) * 64}")
                for i in sets:
                    acc = 80 + 4 * (i if len(sets) == 2 else s & 1)
                    c = "0" if s < 2 // len(sets) else vr(acc)
                    a(f"v_mfma_f32_16x16x32_bf16 {vr(acc)}, {vr(128 + 64 * i + 4 * s)}, {vr(16 + 4 * s)}, {c}")
            if len(sets) == 1:
                a("v_pk_add_f32 v[84:85], v[80:81], v[84:85]")
                a("v_pk_add_f32 v[86:87], v[82:83], v[86:87]")
            for i in sets:
                for r in range(4):
                    a(f"v_mov_b32_dpp v{104 + 8 * i + r}, v{80 + 4 * i + r} quad_perm:[0,0,2,2] row_mask:0xf bank_mask:0xf")
                    a(f"v_mov_b32_dpp v{108 + 8 * i + r}, v{80 + 4 * i + r} quad_perm:[1,1,3,3] row_mask:0xf bank_mask:0xf")

        BUF = lambda n, T: 16 + ((n % 3) * 4 + T) * 4
        ACC = lambda T: 64 + 4 * T
        hb = {}

        def aread(n, Ts=range(4)):
            for T in Ts:
                hb[n] = a(f"ds_read_b128 {vr(BUF(n, T))}, v9 offset:{(T >> 1) * 32768 + order[n] * 2048 + (T & 1) * 256}")

        a(f"s_cmp_lt_u32 {sW}, 4")
        a("s_cbranch_scc1 L_cA")
        s0 = a.snap()
        ub_mm((1,))
        for b in (100, 88):
            a(f"""
            v_and_b32 v{b + 1}, 0xffff0000, v{b}
            v_lshlrev_b32 v{b}, 16, v{b}
            v_and_b32 v{b + 3}, 0xffff0000, v{b + 2}
            v_lshlrev_b32 v{b + 2}, 16, v{b + 2}
            """)
        XU = lambda k: (80 + k) if k < 8 else (104 + k - 8)
        for k in range(8):
            a(f"v_lshlrev_b32 v{XU(2 * k)}, 16, v{92 + k}")
            a(f"v_and_b32 v{XU(2 * k + 1)}, 0xffff0000, v{92 + k}")
        a(f"""
        v_mov_b32 v1, {sTAG}
        v_mov_b32 v2, 0x3f803f80
        v_lshlrev_b32 v3, 3, v0
        v_mul_u32_u24 v4, 144, v8
        v_lshl_add_u32 v4, v7, 3, v4
        v_add_u32 v4, {pRES}, v4
        s_setprio 3
        s_barrier
        """)
        self.stamp("oland", (0, 5))
        aread(0)
        aread(1)
        for n in range(16):
            if n + 2 == 8:
                a("s_barrier")
            if n > 0:
                a.waith(hb[n])
            for T in range(4):
                c = "0" if n == 0 else vr(ACC(T))
                a(f"v_mfma_f32_16x16x32_bf16 {vr(ACC(T))}, {vr(128 + 4 * order[n])}, {vr(BUF(n, T))}, {c}")
                if n + 2 < 16:
                    aread(n + 2, (T,))
        self.stamp("cmm", 5)
        for T in range(4):
            for i in range(2):
                a(f"v_pk_fma_f32 {vr(ACC(T) + 2 * i, 2)}, {vr(ACC(T) + 2 * i, 2)}, {vr(100 + 2 * i, 2)}, {vr(XU(4 * T + 2 * i), 2)}")
            for i in range(2):
                a(f"v_cvt_pk_bf16_f32 v{24 + 2 * T + i}, v{ACC(T) + 2 * i}, v{ACC(T) + 2 * i + 1}")
        for T in range(4):
            a(f"v_dot2_f32_bf16 v{40 + 2 * T}, v{24 + 2 * T}, v2, 0")
            a(f"v_dot2_f32_bf16 v{41 + 2 * T}, v{24 + 2 * T}, v{24 + 2 * T}, 0")
        for T in range(4):
            a(f"v_dot2_f32_bf16 v{40 + 2 * T}, v{25 + 2 * T}, v2, v{40 + 2 * T}")
            a(f"v_dot2_f32_bf16 v{41 + 2 * T}, v{25 + 2 * T}, v{25 + 2 * T}, v{41 + 2 * T}")
        red = ["v_permlane32_swap_b32 v40, v44", "v_permlane32_swap_b32 v41, v45", "v_permlane32_swap_b32 v42, v46",
               "v_permlane32_swap_b32 v43, v47", "v_pk_add_f32 v[40:41], v[40:41], v[44:45]",
               "v_pk_add_f32 v[42:43], v[42:43], v[46:47]", None, "v_permlane16_swap_b32 v40, v42",
               "v_permlane16_swap_b32 v41, v43", "v_pk_add_f32 v[40:41], v[40:41], v[42:43]"]
        for T in range(4):
            for i in range(2):
                a(f"v_pk_mul_f32 {vr(ACC(T) + 2 * i, 2)}, {vr(ACC(T) + 2 * i, 2)}, {vr(88 + 2 * i, 2)}")
            for i in range(2):
                a(f"v_cvt_pk_bf16_f32 v{16 + 2 * T + i}, v{ACC(T) + 2 * i}, v{ACC(T) + 2 * i + 1}")
            if T == 0:
                for x_ in red[:6]:
                    a(x_)
            if T == 1:
                for x_ in red[7:]:
                    a(x_)
        a("""
        v_permlane16_swap_b32 v16, v18
        v_permlane16_swap_b32 v17, v19
        v_permlane16_swap_b32 v20, v22
        v_permlane16_swap_b32 v21, v23
        """)

        def st(sc):
            a(f"buffer_store_dwordx4 v[16:19], {vL16}, {sWS}, {pYS0} offen {sc}")
            a(f"buffer_store_dwordx4 v[20:23], {vL16}, {sWS}, {pYS1} offen {sc}")
            a(f"buffer_store_dwordx2 v[40:41], v3, {sWS}, {pSTS} offen {sc}")
            for T in range(4):
                a(f"ds_write_b64 v4, {vr(24 + 2 * T, 2)} offset:{T * 16 * 144}")
            a("s_barrier")
            a.wait(vm=0)
            self.flag_store("v1", vL16, pYFL, sc)
        self.pub(st)
        self.stamp("cdone", (0, 5))
        a("s_branch L_noC")
        s1 = a.snap()
        a.restore(s0)
        a.L("L_cA")
        self.poll(f"buffer_load_dword v2, v1, {sWS}, {pOPL} offen sc1", ["v2"])
        self.stamp("oflag", (0, 5))
        h0 = tile_dma(G_O, 0)
        tile_dma(G_O, 1, (0,))
        a.waith(h0)
        a("s_barrier")
        h1 = tile_dma(G_O, 1, (1,))
        NSTG = [8]
        for g in range(4):
            if g == 1:
                a.waith(h1)
                a("s_barrier")
            a(f"s_add_u32 {T0}, {sW2B}, {g * 4096}")
            a(f"s_add_u32 m0, {pW2S}, {g * 4096}")
            for k in range(4):
                self.dma(vL16, sWS, T0, off=k * 1024, sc="sc1")
        a("""
        v_and_b32 v1, 7, v0
        v_lshlrev_b32 v1, 2, v1
        v_lshlrev_b32 v3, 3, v0
        """)
        ub_mm((0, 1), True)
        self.poll(f"buffer_load_dword v2, v1, {sWS}, {pYPL} offen sc1", ["v2"])
        self.stamp("yflag", (0, 5))
        hy0 = tile_dma(G_X1, 0)
        hya = tile_dma(G_X1, 1, (0,))
        a.merge(s1)
        a.L("L_noC")
        a(f"""
        s_lshl_b32 {T0}, {sW}, 9
        s_lshl1_add_u32 {T1}, {T0}, {L_SP - 4096}
        v_add_u32 v1, {T1}, {vL16}
        s_add_u32 {T1}, {T0}, {L_SF}
        v_add_u32 v5, {T1}, v3
        v_lshl_add_u32 v4, v8, 3, {T1}
        v_add_u32 v11, {L_SP}, v3
        v_mul_u32_u24 v2, 144, v7
        s_mul_i32 {T0}, {sW}, {4 * 144}
        s_add_u32 {T0}, {T0}, {L_RES}
        v_lshl_add_u32 v2, v8, 3, v2
        v_add_u32 v124, {T0}, v2
        """)
        a.waith(hy0)
        a.wait(lg=0)
        a("s_barrier")
        self.stamp("x1land", (0, 5, 6))

        def st_loads():
            for i in range(4):
                a(f"buffer_load_dwordx4 {vr(64 + 4 * i)}, {vL16}, {sWS}, {pSTL} offen offset:{i * 1024} sc1")
        ACC2 = lambda i, T: 64 + 16 * i + 4 * T
        W2R = lambda ks, f: 128 + 64 * f + 4 * order[ks]

        def w2load(ks, f):
            if o.get("now2"):
                return
            if ks < NSTG[0]:
                return a(f"ds_read_b128 {vr(W2R(ks, f))}, v10 offset:{ks * 2048 + f * 1024}")
            if ks & 1 == 0:
                a(f"s_add_u32 {(T2, T3)[f]}, {sW2B}, {ks * 2048}")
            a(f"buffer_load_dwordx4 {vr(W2R(ks, f))}, {vL16}, {sWS}, {(T2, T3)[f]} offen offset:{(ks & 1) * 2048 + f * 1024} sc1")

        def fin0():
            for k in range(4):
                a(f"v_add_f32 v{64 + k}, v{64 + k}, v{68 + k}")
                a(f"v_add_f32 v{72 + k}, v{72 + k}, v{76 + k}")
            for k in range(4):
                a(f"v_add_f32 v{64 + k}, v{64 + k}, v{72 + k}")
            return a("ds_write_b128 v1, v[64:67]")

        def fin1():
            for i in range(4):
                a(f"ds_read_b64 {vr(96 + 2 * i, 2)}, v11 offset:{i * 512}")

        def fin2():
            a(unpk("""
            v_pk_add_f32 v[96:97], v[96:97], v[98:99]
            v_pk_add_f32 v[100:101], v[100:101], v[102:103]
            v_pk_add_f32 v[12:13], v[96:97], v[100:101]
            """))
            for i in range(4):
                a(f"ds_read_b64 {vr(96 + 2 * i, 2)}, v11 offset:{(4 + i) * 512}")

        def fin3():
            a(unpk(f"""
            v_pk_add_f32 v[96:97], v[96:97], v[98:99]
            v_pk_add_f32 v[100:101], v[100:101], v[102:103]
            v_pk_add_f32 v[12:13], v[12:13], v[96:97]
            v_pk_add_f32 v[12:13], v[12:13], v[100:101]
            v_mul_f32 v12, {f2u(1.0 / 512)}, v12
            v_mul_f32 v13, {f2u(1.0 / 512)}, v13
            """))

        def fin4():
            a(f"""
            v_fma_f32 v13, -v12, v12, v13
            v_max_f32 v13, 0, v13
            v_add_f32 v13, {f2u(1e-5)}, v13
            v_rsq_f32 v14, v13
            v_mov_b32 v2, {sTAG}
            v_mul_f32 v15, -v12, v14
            ds_write_b64 v5, v[14:15]
            """)
            for T in range(4):
                a(f"ds_read_b64 {vr(96 + 2 * T, 2)}, v4 offset:{T * 128}")

        def res_read():
            a("ds_read_b64 v[12:13], v124")
            a(f"ds_read_b64 v[14:15], v124 offset:{32 * 144}")

        fin = {7: fin1, 9: fin2, 11: fin3, 12: fin4, 13: res_read}
        DB = o.get("db", 6)

        def dloop(sets, w2, DBn, hy1):
            aread(0)
            aread(1)
            for n in range(16):
                if n in (2, 9, 12):
                    self.stamp(f"d{n}", 6)
                if n == DBn:
                    self.stamp("dpre", 6)
                    if len(sets) == 1:
                        a.waith(fin0())
                    a.waith(*hy1)
                    self.stamp("dwait", 6)
                    a("s_barrier")
                    self.stamp("dbar", 6)
                if n > 0:
                    a.waith(hb[n])
                for T in range(4):
                    for i in sets:
                        c = "0" if n == 0 else vr(ACC2(i, T))
                        a(f"v_mfma_f32_16x16x32_bf16 {vr(ACC2(i, T))}, {vr(128 + 64 * i + 4 * order[n])}, {vr(BUF(n, T))}, {c}")
                    if n + 2 < 16:
                        aread(n + 2, (T,))
                    for ks, f in w2.get((n, T), []):
                        w2load(ks, f)
                    if n - 14 in sets:
                        dbias(n - 14, T)
                if n in fin:
                    fin[n]()

        TB = lambda i: (32, 48)[i]

        def dbias(i, T):
            ub = 104 + 8 * i
            for k in range(4):
                a(f"v_fma_f32 v{TB(i) + 4 * T + k}, v{97 + 2 * T}, v{ub + k}, v{ub + 4 + k}")

        def depi(i, packed):
            for T in range(4):
                for k in range(2):
                    t, acc = TB(i) + 4 * T + 2 * k, ACC2(i, T) + 2 * k
                    if packed:
                        a(f"v_pk_fma_f32 {vr(acc, 2)}, {vr(96 + 2 * T, 2)}, {vr(acc, 2)}, {vr(t, 2)} op_sel_hi:[0,1,1]")
                    else:
                        a(f"v_fma_f32 v{acc}, v{96 + 2 * T}, v{acc}, v{t}")
                        a(f"v_fma_f32 v{acc + 1}, v{96 + 2 * T}, v{acc + 1}, v{t + 1}")
                for k in range(2):
                    a(f"v_cvt_pk_bf16_f32 v{16 + 8 * i + 2 * T + k}, v{ACC2(i, T) + 2 * k}, v{ACC2(i, T) + 2 * k + 1}")
                for k in range(2):
                    r = 16 + 8 * i + 2 * T + k
                    a(f"v_pk_max_i16 v{r}, v{r}, 0")
            b = 16 + 8 * i
            a(f"""
            v_permlane16_swap_b32 v{b}, v{b + 2}
            v_permlane16_swap_b32 v{b + 1}, v{b + 3}
            v_permlane16_swap_b32 v{b + 4}, v{b + 6}
            v_permlane16_swap_b32 v{b + 5}, v{b + 7}
            """)

        a(f"s_cmp_ge_u32 {sW}, 4")
        a("s_cbranch_scc1 L_dB")
        s0 = a.snap()
        a(f"s_setprio {o.get('dpa', 0)}")
        w2 = {}
        for ks in range(11):
            w2[ks + 1, 3] = [(ks, 0)]
            w2[ks + 2, 1] = [(ks, 1)]
        dloop((0, 1), w2, DB, [hya])
        self.stamp("dmm", (5, 6))
        depi(0, o.get('apk', 1))

        def stA0(sc):
            a(f"buffer_store_dwordx4 v[16:19], {vL16}, {sWS}, {pHS0} offen {sc}")
            a(f"buffer_store_dwordx4 v[20:23], {vL16}, {sWS}, {pHS1} offen {sc}")
        self.pub(stA0)
        depi(1, o.get('apk', 1))

        def stA(sc):
            a(f"buffer_store_dwordx4 v[24:27], {vL16}, {sWS}, {pHS0} offen offset:1024 {sc}")
            a(f"buffer_store_dwordx4 v[28:31], {vL16}, {sWS}, {pHS1} offen offset:1024 {sc}")
            a.wait(vm=0)
            self.flag_store("v2", vL16, pHFL, sc)
        self.pub(stA)
        a("s_branch L_dDone")
        s1 = a.snap()
        a.restore(s0)
        a.L("L_dB")
        NSTG[0] = 0
        hy1 = tile_dma(G_X1, 1, (1,))
        st_loads()
        s0 = a.snap()
        a(f"s_cmp_ge_u32 {sW}, {pNV}")
        a("s_cbranch_scc1 L_dN")
        a(f"s_setprio {o.get('dpb', 2)}")
        w2 = {}
        for ks in range(11):
            w2[ks // 2, 2 * (ks & 1)] = [(ks, 0)]
            w2[max(ks + 1, 6 + ks // 2), 1 + 2 * (ks & 1)] = [(ks, 1)]
        dloop((1,), w2, o.get("dbb", 6), [hy1])
        self.stamp("dmm", (5, 6))
        depi(1, False)

        def stB(sc):
            a(f"buffer_store_dwordx4 v[24:27], {vL16}, {sWS}, {pHS0} offen {sc}")
            a(f"buffer_store_dwordx4 v[28:31], {vL16}, {sWS}, {pHS1} offen {sc}")
            a.wait(vm=0)
            self.flag_store("v2", vL16, pHFL, sc)
        self.pub(stB)
        a("s_branch L_dDone")
        s2 = a.snap()
        a.restore(s0)
        a.L("L_dN")
        a(f"v_mov_b32 v2, {sTAG}")
        self.pub(lambda sc: self.flag_store("v2", vL16, pHFL, sc))
        hl = fin0()
        a.waith(hy1, hl)
        a("s_barrier")
        for ks in range(11):
            w2load(ks, 0)
            w2load(ks, 1)
        res_read()
        a.merge(s1)
        a.merge(s2)
        a.L("L_dDone")
        self.stamp("ddone", (0, 5, 6))
        a(f"""
        s_setprio 0
        v_and_b32 v1, 7, v0
        v_lshlrev_b32 v1, 2, v1
        v_and_b32 v3, 31, v0
        v_mul_u32_u24 v3, {RED_ROW}, v3
        v_lshrrev_b32 v2, 5, v0
        v_lshl_add_u32 v3, v2, 4, v3
        s_mul_i32 {T1}, {sW}, {RED_W}
        v_add_u32 v9, {T1}, v3
        v_mul_u32_u24 v3, {RED_ROW}, v7
        v_lshl_add_u32 v3, v8, 4, v3
        s_mul_i32 {T1}, {sW}, {4 * RED_ROW}
        v_add_u32 v10, {T1}, v3
        v_add_u32 v11, {4 * RED_W}, v10
        v_lshlrev_b32 v4, 10, v7
        v_lshl_add_u32 v4, v8, 3, v4
        v_and_b32 v121, 0xffff0000, v120
        v_lshlrev_b32 v120, 16, v120
        v_and_b32 v123, 0xffff0000, v122
        v_lshlrev_b32 v122, 16, v122
        """)
        a.wait(lg=0)
        a("s_barrier")
        self.poll(f"buffer_load_dword v2, v1, {sWS}, {pHPL} offen sc1", ["v2"])
        self.stamp("hflag", (0, 5))
        NE = o.get("ne", 6)
        ring = [80 + 4 * i for i in range(10)]
        HB = lambda n: ring[n % 10]

        def hload(n):
            if n >= 22:
                return
            tt, ks = divmod(n, 11)
            if ks % 4 == 0:
                a(f"s_add_u32 {T0}, {pHLD}, {tt * 86 * 1024 + ks * 1024}")
            off = f" offset:{(ks % 4) * 1024}" if ks % 4 else ""
            a(f"buffer_load_dwordx4 {vr(HB(n))}, {vL16}, {sWS}, {T0} offen{off} sc1")

        for n in range(NE):
            hload(n)
        EA = lambda tt, f: 16 + 32 * tt + 16 * f

        def pwrite(tt, n):
            f, q = divmod(n, 4)
            return a(f"ds_write_b128 v9, {vr(EA(tt, f) + 4 * q)} offset:{tt * 32 * RED_ROW + f * 128 + q * 32}")

        def pread(tt, R):
            for src in range(8):
                ad = "v10" if src < 4 else "v11"
                a(f"ds_read_b128 {vr(R + 4 * src)}, {ad} offset:{(src & 3) * RED_W + tt * 32 * RED_ROW}")

        def psum(tt, R):
            p = lambda i, k: vr(R + 4 * i + 2 * k, 2)
            uf = unpk if tt == 0 and o.get("e2", 1) else (lambda t: t)
            a(f"v_lshlrev_b32 v124, 16, v{12 + 2 * tt}")
            a(f"v_and_b32 v125, 0xffff0000, v{12 + 2 * tt}")
            a(f"v_lshlrev_b32 v126, 16, v{13 + 2 * tt}")
            a(f"v_and_b32 v127, 0xffff0000, v{13 + 2 * tt}")
            for i, j_ in ((0, 1), (2, 3), (4, 5), (6, 7), (0, 2), (4, 6), (0, 4)):
                for k in range(2):
                    a(uf(f"v_pk_add_f32 {p(i, k)}, {p(i, k)}, {p(j_, k)}"))
            for k in range(2):
                a(uf(f"v_pk_fma_f32 {p(0, k)}, {p(0, k)}, {vr(120 + 2 * k, 2)}, {vr(124 + 2 * k, 2)}"))
            for k in range(2):
                a(f"v_cvt_pk_bf16_f32 v{R + 4 + k}, v{R + 2 * k}, v{R + 2 * k + 1}")
            if tt:
                a(f"s_add_u32 {pOUT}, {pOUT}, 32768")
            a(f"buffer_store_dwordx2 {vr(R + 4, 2)}, v4, {sOUT}, {pOUT} offen")

        for tt in range(2):
            for ks in range(11):
                n = tt * 11 + ks
                if n in (0, 8, 15, 20):
                    a(f"s_setprio {3 - (0, 8, 15, 20).index(n)}")
                if ks == 10:
                    lab = a.newlabel("L_k10")
                    a(f"s_cmp_ge_u32 {sW}, 6")
                    a(f"s_cbranch_scc1 {lab}")
                    sk = a.snap()
                for f in range(2):
                    c = "0" if ks == 0 else vr(EA(tt, f), 16)
                    a(f"v_mfma_f32_32x32x16_bf16 {vr(EA(tt, f), 16)}, {vr(W2R(ks, f))}, {vr(HB(n))}, {c}")
                if ks == 10:
                    a.merge(sk)
                    a.L(lab)
                hload(n + NE)
                if tt == 1 and 2 <= ks < 6:
                    pwrite(0, 2 * (ks - 2))
                    hp = pwrite(0, 2 * (ks - 2) + 1)
                if tt == 1 and ks == o.get("eb", 8) and o.get("e2", 1):
                    a.waith(hp)
                    a("s_barrier")
                    pread(0, 16)
        self.stamp("emm", 5)
        for n in range(8):
            pwrite(1, n)
        if o.get("e2", 1):
            psum(0, 16)
        a.wait(lg=0)
        a("s_barrier")
        self.stamp("edone", (0, 5))
        if not o.get("e2", 1):
            pread(0, 16)
        pread(1, 48)
        if not o.get("e2", 1):
            psum(0, 16)
        psum(1, 48)

    def finish(self):
        a = self.a
        a(f"s_or_b32 {T0}, s2, {sW}")
        a(f"s_cmp_lg_u32 {T0}, 0")
        a("s_cbranch_scc1 L_fin")
        a(f"v_mov_b32 v1, {sTAG}")
        self.flag_store("v1", "v6", "0", "sc1")
        a.L("L_fin")
        if self.stamps:
            a.wait(vm=0)
            self.stamp("end")
            a(f"""
            s_lshl_b32 {T0}, s2, 3
            s_add_u32 {T0}, {T0}, {sW}
            s_lshl_b32 {T0}, {T0}, 7
            s_add_u32 {T0}, {T0}, {WS_STAMP}
            """)
            for i in range(16):
                a(f"v_mov_b32 v{16 + i}, s{STAMP0 + i}")
            a("v_mov_b32 v32, s100")
            a("s_mov_b64 exec, 1")
            for i in range(4):
                a(f"buffer_store_dwordx4 {vr(16 + 4 * i)}, v6, {sWS}, {T0} offen offset:{16 * i}")
            a(f"buffer_store_dword v32, v6, {sWS}, {T0} offen offset:64")
            if "ampb" in self.opt:
                a(f"s_cmp_lg_u32 s2, 100")
                a("s_cbranch_scc1 L_end")
                a(f"s_cmp_lg_u32 {sW}, 0")
                a("s_cbranch_scc1 L_end")
                a(f"s_sub_u32 {T0}, s{STAMP0 + self.opt['ampb']}, s{STAMP0 + self.opt['ampa']}")
                a(f"s_mul_i32 {T0}, {T0}, 10")
                a(f"s_min_u32 {T0}, {T0}, 200000")
                a.L("L_amp")
                a("s_memrealtime s[82:83]")
                a.wait(lg=0)
                a(f"s_sub_u32 {T1}, s82, s{STAMP0 + self.nstamp - 1}")
                a(f"s_cmp_lt_u32 {T1}, {T0}")
                a("s_cbranch_scc1 L_amp")
            if self.opt.get("dbg"):
                a(f"s_cmp_lg_u32 s2, {self.opt['dbg'] - 1}")
                a("s_cbranch_scc1 L_end")
                a(f"s_cmp_lg_u32 {sW}, 0")
                a("s_cbranch_scc1 L_end")
                self.srd(sC, 22, 256)
                a("s_memrealtime s[82:83]")
                for i in range(1, 16):
                    a(f"v_subrev_u32 v{16 + i}, s{STAMP0}, v{16 + i}")
                a.wait(lg=0)
                a("s_sub_u32 s82, s82, s100")
                a("v_mov_b32 v16, s82")
                for i in range(4):
                    a(f"buffer_store_dwordx4 {vr(16 + 4 * i)}, v6, {sC}, 0 offen offset:{16 * i}")
        a.L("L_end")
        a("s_endpgm")
        if hasattr(self, "slow_state"):
            self.slow_path()
        n = a.fix_hazards()
        return n


HEADER = """; Fused adaLN-conditioned block (LN+modulate -> MHA -> gated residual -> LN+modulate -> ReLU FFN -> gated residual)
; Kernarg: 0 A_x | 8 A_wqkv | 16 A_wo | 24 B_x | 32 B_w1 | 40 B_w2 | 48 c | 56 w_mod | 64 out | 72 debug | 80 ws
; @launch grid=(256,1,1) block=(512,1,1) lds=163840
.amdgcn_target "amdgcn-amd-amdhsa--gfx950"
.text
.globl {name}_kernel
.p2align 8
.type {name}_kernel,@function
{name}_kernel:
"""
FOOTER = """
    s_endpgm
L_code_end:
.p2align 8
.fill {pad}, 4, 0xbf810000
.section .rodata,"a"
.p2align 6
.amdhsa_kernel {name}_kernel
  .amdhsa_next_free_vgpr 256
  .amdhsa_next_free_sgpr 102
  .amdhsa_accum_offset 256
  .amdhsa_group_segment_fixed_size 0
  .amdhsa_kernarg_size 88
  .amdhsa_user_sgpr_count 2
  .amdhsa_user_sgpr_kernarg_segment_ptr 1
  .amdhsa_system_sgpr_workgroup_id_x 1
.end_amdhsa_kernel
"""


def generate(**kw):
    g = Gen(**kw)
    n = g.build()
    txt = HEADER.format(name=NAME) + g.a.text() + FOOTER.format(name=NAME, pad=64)
    return txt, g


if __name__ == "__main__":
    import argparse
    ap = argparse.ArgumentParser()
    ap.add_argument("-o", default=f"cdna_kernels/{NAME}.s")
    ap.add_argument("--stamps", action="store_true")
    ap.add_argument("--stop", default=None)
    ap.add_argument("--safe", action="store_true")
    ap.add_argument("--slow", action="store_true")
    ap.add_argument("--opt", default="")
    args = ap.parse_args()
    kw = {}
    for o in filter(None, args.opt.split(",")):
        k, v = o.split("=")
        kw[k] = int(v)
    txt, g = generate(stamps=args.stamps, stop=args.stop, force_safe=args.safe, force_slow=args.slow, **kw)
    open(args.o, "w").write(txt)
    print("wrote", args.o, len(txt), "bytes;", len(g.a.ins), "lines; stamps:", g.stamp_names)
```
